```python
import torch

def _softmax(x, axis=-1):
    return torch.softmax(x, dim=axis)
def _gelu(x):
    return torch.nn.functional.gelu(x, approximate="tanh")
def _silu(x):
    return torch.nn.functional.silu(x)
def _sigmoid(x):
    return torch.sigmoid(x)
def _layernorm(x, axis=-1, eps=1e-5):
    m = x.mean(dim=axis, keepdim=True)
    v = x.var(dim=axis, keepdim=True, unbiased=False)
    return (x - m) / torch.sqrt(v + eps)
def _scatter_add(tgt, idx, src, axis=0):
    return tgt.clone().index_add_(axis, idx, src)
def _segment_sum(src, seg, n):
    out = torch.zeros((n,) + src.shape[1:], dtype=src.dtype)
    return out.index_add_(0, seg, src)
def _pad(x, pw):
    flat = tuple(v for pair in reversed(pw) for v in pair)
    return torch.nn.functional.pad(x, flat)

kernel_name = 'recurrent_scan__sliding_block__glu_gated_swiglu__prompt'

def setup_inputs():

    _w = (lambda a: (lambda t: t.to(torch.bfloat16) if t.is_floating_point() else t)(torch.as_tensor(a)))
    def _A_setup():
        B, S, D = 1, 2048, 448
        return {
            "x": _w((lambda *s: torch.randn(*s, dtype=torch.bfloat16) * 0.05)(B, S, D)),
            "wqkv": _w((lambda *s: torch.randn(*s, dtype=torch.bfloat16) * 0.2)(D, 3 * D)),
            "wo": _w((lambda *s: torch.randn(*s, dtype=torch.bfloat16) * 0.2)(D, D)),
        }
    _A_in = _A_setup()

    def _B_setup():
        B, S, D, F = 1, 2048, 448, 1792
        return {
            "x": _w((lambda *s: torch.randn(*s, dtype=torch.bfloat16) * 0.05)(B, S, D)),
            "w1": _w((lambda *s: torch.randn(*s, dtype=torch.bfloat16) * 0.1)(D, F) * (2.0 / D) ** 0.5),
            "w3": _w((lambda *s: torch.randn(*s, dtype=torch.bfloat16) * 0.1)(D, F) * (2.0 / D) ** 0.5),
            "w2": _w((lambda *s: torch.randn(*s, dtype=torch.bfloat16) * 0.1)(F, D) * (2.0 / F) ** 0.5),
        }
    _B_in = _B_setup()

    return {
        "A_x": _A_in["x"],
        "A_wqkv": _A_in["wqkv"],
        "A_wo": _A_in["wo"],
        "B_x": _B_in["x"],
        "B_w1": _B_in["w1"],
        "B_w3": _B_in["w3"],
        "B_w2": _B_in["w2"],
    }

def reference(A_x, A_wqkv, A_wo, B_x, B_w1, B_w3, B_w2):
    def _A_ref(x, wqkv, wo):
        B, S, D = x.shape
        H = 16; Dh = D // H; W = 256
        qkv = (lambda x, *d: x.permute(*d))((x @ wqkv).reshape(B, S, 3, H, Dh), 2, 0, 3, 1, 4)
        q, k, v = qkv[0], qkv[1], qkv[2]
        scores = torch.einsum("bhqd,bhkd->bhqk", q, k) * (Dh ** -0.5)
        idx = torch.arange(S)
        mask = (idx[:, None] - idx[None, :] >= 0) & (idx[:, None] - idx[None, :] < W)
        scores = torch.where(mask[None, None], scores, -1e9)
        p = _softmax(scores, axis=-1)
        o = torch.einsum("bhqk,bhkd->bhqd", p, v)
        return (lambda x, *d: x.permute(*d))(o, 0, 2, 1, 3).reshape(B, S, D) @ wo

    def _B_ref(x, w1, w3, w2):
        gate = torch.einsum("bsd,df->bsf", x, w1)
        up = torch.einsum("bsd,df->bsf", x, w3)
        h = _silu(gate) * up
        out = torch.einsum("bsf,fd->bsd", h, w2)
        return out

    x = A_x
    xn = _layernorm(x, axis=-1)
    s = _A_ref(xn, A_wqkv, A_wo)
    g = _silu(_B_ref(xn, B_w1, B_w3, B_w2))
    return x + s * g
```

```python
NAME = "recurrent_scan__sliding_block__glu_gated_swiglu__prompt"

class Asm:
    def __init__(self):
        self.lines = []
    def __call__(self, s=""):
        for l in s.split("\n"):
            self.lines.append("    " + l.strip() if l.strip() and not l.strip().endswith(":") else l.strip())
    def label(self, n):
        self.lines.append(n + ":")
    def text(self):
        return "\n".join(self.lines) + "\n"

def kernel_header(name):
    return f""".globl {name}
.p2align 8
.type {name},@function
{name}:
"""

def kernel_desc(name, vgpr, sgpr, accum):
    return f""".amdhsa_kernel {name}
  .amdhsa_next_free_vgpr {vgpr}
  .amdhsa_next_free_sgpr {sgpr}
  .amdhsa_accum_offset {accum}
  .amdhsa_group_segment_fixed_size 0
  .amdhsa_kernarg_size 80
  .amdhsa_user_sgpr_count 2
  .amdhsa_user_sgpr_kernarg_segment_ptr 1
  .amdhsa_system_sgpr_workgroup_id_x 1
.end_amdhsa_kernel
"""

def wrap(kernels, launches):
    s = ""
    if len(launches) == 1 and launches[0][0] == NAME + "_kernel":
        _, g, b, lds = launches[0]
        s += f"; @launch grid=({g},1,1) block=({b},1,1) lds={lds}\n"
    else:
        for n, g, b, lds in launches:
            s += f"; @launch kernel={n} grid=({g},1,1) block=({b},1,1) lds={lds}\n"
    s += '.amdgcn_target "amdgcn-amd-amdhsa--gfx950"\n.text\n'
    for n, body, *_ in kernels:
        s += kernel_header(n) + body + "    s_endpgm\n"
    s += '.section .rodata,"a"\n'
    for n, _, v, sg, acc in kernels:
        s += ".p2align 6\n" + kernel_desc(n, v, sg, acc)
    return s
```

```python
import re, copy

TRANS = ("v_exp_f32", "v_rcp_f32", "v_rsq_f32", "v_log_f32", "v_sqrt_f32")
REG = re.compile(r"^(-|abs\()?([vs])(\d+)\)?$")
RNG = re.compile(r"^([vs])\[(\d+):(\d+)\]$")


def regs(tok):
    tok = tok.strip()
    m = RNG.match(tok)
    if m:
        return {(m.group(1), i) for i in range(int(m.group(2)), int(m.group(3)) + 1)}
    m = REG.match(tok)
    if m:
        return {(m.group(2), int(m.group(3)))}
    if tok == "vcc":
        return {("s", "vcc")}
    if tok == "m0":
        return {("s", "m0")}
    if tok == "exec":
        return {("s", "exec")}
    return set()


class Op:
    __slots__ = ("text", "vm", "lg", "nvm", "nlg")

    def __init__(self, text, vm=None, lg=None, nvm=(), nlg=()):
        self.text = text.strip()
        self.vm, self.lg = vm, lg
        self.nvm = (nvm,) if isinstance(nvm, str) else tuple(nvm)
        self.nlg = (nlg,) if isinstance(nlg, str) else tuple(nlg)


def decode(text):
    parts = text.split(None, 1)
    mn = parts[0]
    ops = []
    if len(parts) > 1:
        ops = [o.strip() for o in parts[1].split(",")]
        last = ops[-1].split()
        if last:
            ops[-1] = last[0]
    full = text
    d = dict(mn=mn, kind="other", w=set(), r=set(), c=set(), passes=0, dpp=False, wide=False, lds=False)
    R = lambda i: regs(ops[i]) if i < len(ops) else set()
    if mn.startswith("v_mfma"):
        d["kind"] = "mfma"
        d["w"] = R(0); d["r"] = R(1) | R(2); d["c"] = R(3)
        d["passes"] = 8 if "32x32" in mn else 4
    elif mn.startswith("v_"):
        d["kind"] = "valu"
        d["w"] = R(0)
        for i in range(1, len(ops)):
            d["r"] |= R(i)
        if mn.startswith(("v_fmac", "v_dot2c", "v_permlane")) :
            d["r"] |= R(0)
        if mn.startswith("v_permlane"):
            d["w"] |= R(1)
        if mn.startswith("v_cndmask") and len(ops) == 3:
            d["r"] |= {("s", "vcc")}
        d["dpp"] = "_dpp" in mn
    elif mn.startswith("ds_read") or mn.startswith("ds_bpermute"):
        d["kind"] = "ds"; d["w"] = R(0)
        for i in range(1, len(ops)):
            d["r"] |= R(i)
    elif mn.startswith("ds_write"):
        d["kind"] = "ds"
        for i in range(len(ops)):
            d["r"] |= R(i)
    elif mn.startswith("buffer_load"):
        d["kind"] = "vmem"
        if " lds" in full:
            d["lds"] = True
            for i in range(len(ops)):
                d["r"] |= R(i)
        else:
            d["w"] = R(0)
            for i in range(1, len(ops)):
                d["r"] |= R(i)
    elif mn.startswith("buffer_store") or mn.startswith("buffer_atomic"):
        d["kind"] = "vmem"
        for i in range(len(ops)):
            d["r"] |= R(i)
        d["wide"] = mn.endswith("x4") or mn.endswith("x3")
        d["data"] = R(0)
    elif mn.startswith("s_"):
        d["kind"] = "salu"
        if not mn.startswith(("s_cmp", "s_cbranch", "s_branch", "s_waitcnt", "s_nop", "s_barrier", "s_bitcmp", "s_setprio", "s_sleep", "s_endpgm")):
            d["w"] = R(0)
            for i in range(1, len(ops)):
                d["r"] |= R(i)
        else:
            for i in range(len(ops)):
                d["r"] |= R(i)
    return d


def need_states(p, c):
    n = 0
    pv = {x for x in p["w"] if x[0] == "v"}
    ps = {x for x in p["w"] if x[0] == "s"}
    if p["kind"] == "valu":
        if c["kind"] == "mfma" and pv & (c["r"] | c["c"]):
            n = max(n, 2)
        if c["kind"] == "valu":
            if pv & c["r"]:
                if c["dpp"] or c["mn"].startswith("v_permlane"):
                    n = max(n, 2)
                if c["mn"].startswith(("v_readfirstlane", "v_readlane")):
                    n = max(n, 1)
                if p["mn"].startswith(TRANS) and not c["mn"].startswith(TRANS):
                    n = max(n, 1)
            if p["mn"].startswith("v_dot2") and c["mn"] != p["mn"] and pv & (c["r"] | c["w"]):
                n = max(n, 3)
            if ps & c["r"]:
                n = max(n, 2)
        if p["mn"].startswith(TRANS) and c["kind"] in ("vmem", "ds") and pv & c["r"]:
            n = max(n, 1)
        if p["mn"].startswith("v_dot2") and c["kind"] in ("vmem", "ds", "mfma") and pv & (c["r"] | c["c"]):
            n = max(n, 3)
        if c["kind"] == "vmem" and ps & c["r"]:
            n = max(n, 5)
        if c["kind"] == "salu" and ps & c["r"]:
            n = max(n, 1)
    if p["kind"] == "mfma":
        big = 12 if p["passes"] == 8 else 8
        if c["kind"] == "mfma":
            if pv & c["r"]:
                n = max(n, big)
            if pv & c["c"] and not (pv == c["c"] and p["passes"] == c["passes"]):
                n = max(n, big - 2)
            if pv & c["w"] and not (pv == c["c"] and p["passes"] == c["passes"]):
                n = max(n, big - 2)
        elif pv & (c["r"] | c["w"]):
            n = max(n, big)
        if c["kind"] == "valu" and p["c"] & c["w"]:
            n = max(n, 7 if p["passes"] == 8 else 3)
    if p["kind"] == "vmem" and p["wide"] and p["data"] & c["w"]:
        n = max(n, 2)
    if p["kind"] == "salu" and ("s", "m0") in ps and c["kind"] == "vmem" and c["lds"]:
        n = max(n, 1)
    return n


class Stream:
    def __init__(self):
        self.out = []
        self.vmq, self.lgq = [], []
        self.hist = []
        self.nops = 0
        self.waits = 0

    def fork(self):
        s = Stream()
        s.vmq, s.lgq = list(self.vmq), list(self.lgq)
        s.hist = copy.deepcopy(self.hist)
        return s

    def _emit(self, text):
        d = decode(text)
        need = 0
        for p, dist in self.hist:
            need = max(need, need_states(p, d) - dist)
        if need > 0:
            self.out.append(f"    s_nop {need - 1}")
            self.nops += 1
            self._age(need)
        self.out.append("    " + text)
        adv = 1
        if d["mn"] == "s_nop":
            adv = int(text.split()[1]) + 1
        self._age(adv)
        self.hist.append([d, 0])

    def _age(self, n):
        for h in self.hist:
            h[1] += n
        self.hist = [h for h in self.hist if h[1] < 13]

    def label(self, name):
        self.out.append(name + ":")

    def raw(self, text):
        self.out.append("    " + text)

    def wait(self, nvm=(), nlg=()):
        nvm = (nvm,) if isinstance(nvm, str) else nvm
        nlg = (nlg,) if isinstance(nlg, str) else nlg
        w = []
        hit = lambda t: any(x in nvm for x in t) if isinstance(t, tuple) else t in nvm
        idx = max([i for i, t in enumerate(self.vmq) if hit(t)], default=-1)
        if idx >= 0:
            n = min(len(self.vmq) - 1 - idx, 63)
            self.vmq = self.vmq[len(self.vmq) - n:] if n else []
            w.append(f"vmcnt({n})")
        idx = max([i for i, t in enumerate(self.lgq) if t in nlg], default=-1)
        if idx >= 0:
            n = min(len(self.lgq) - 1 - idx, 15)
            self.lgq = self.lgq[len(self.lgq) - n:] if n else []
            w.append(f"lgkmcnt({n})")
        if w:
            self._emit("s_waitcnt " + " ".join(w))
            self.waits += 1

    def drain(self, vm=True, lg=True):
        w = []
        if vm:
            w.append("vmcnt(0)"); self.vmq = []
        if lg:
            w.append("lgkmcnt(0)"); self.lgq = []
        self._emit("s_waitcnt " + " ".join(w))

    def add(self, op):
        if isinstance(op, (list, tuple)):
            for o in op:
                self.add(o)
            return
        if isinstance(op, str):
            for l in op.split("\n"):
                l = l.strip()
                if not l:
                    continue
                if l.endswith(":"):
                    self.label(l[:-1])
                else:
                    self._emit(l)
            return
        if callable(op):
            op(self)
            return
        self.wait(op.nvm, op.nlg)
        if op.text:
            self._emit(op.text)
        if op.vm is not None:
            self.vmq.append(op.vm)
            assert len(self.vmq) <= 63, "vmcnt overflow"
        if op.lg is not None:
            self.lgq.append(op.lg)

    __call__ = add

    def text(self):
        return "\n".join(self.out) + "\n"


def interleave(main, side, start=0, end=None):
    n = len(main)
    end = n if end is None else end
    out = []
    k = 0
    span = max(end - start, 1)
    for i, g in enumerate(main):
        out.extend(g)
        if start <= i < end:
            tgt = (len(side) * (i - start + 1) + span - 1) // span
            while k < tgt:
                out.append(side[k]); k += 1
    out.extend(side[k:])
    return out


def join(a, c):
    assert a.lgq == c.lgq, (a.lgq, c.lgq)
    n = 0
    while n < min(len(a.vmq), len(c.vmq)) and a.vmq[-1 - n] == c.vmq[-1 - n]:
        n += 1
    extra = [t for t in a.vmq[:len(a.vmq) - n]] + [t for t in c.vmq[:len(c.vmq) - n]]
    tail = a.vmq[len(a.vmq) - n:] if n else []
    flat = tuple(x for t in extra for x in (t if isinstance(t, tuple) else (t,)))
    a.vmq = ([flat] if flat else []) + tail
    c.vmq = list(a.vmq)
```

```python
import sys
from emit import Stream, Op, interleave, join
from asmgen import NAME, wrap

FLAGS = 0x0
EPOCH = 0x8000
STAT = 0x10000
CS = 0x20000
POISON = 0x70000
QKV = 0x100000
HWS = 0x800000
OWS = 0x1000000
PROF = 0x1400000
WS_RECORDS = 0x2000000
QKV_TB, H_TB, O_TB = 192 * 512, 4 * 28 * 1024, 4 * 8 * 1024
NEG_BIG = 0xF149F2CA
C_EXP = 0x3E8B97F6

V_H2, V_LANE, V_L16, V_WQ, V_WF, V_WL, V_W2, V_XD, V_POLL = range(9)
V_XR = [9, 10, 11, 12]
V_WA = [13, 14, 15]
XF, ACC, WF, TMP = 16, 128, 208, 224
V_REC, V_MU = TMP + 24, TMP + 28
V_QLD, V_OSTV, V_VD, V_GP = V_WQ, V_WL, V_XD, V_WF
V_KE, V_KO, V_VE, V_VO = V_XR
V_Q = TMP + 28
S16, SP, OACC, V_PT = ACC, ACC + 4, ACC + 68, ACC + 76
FACC, SACC = ACC, ACC + 32
V_GA = [[TMP + 0, TMP + 1], [TMP + 2, TMP + 3], [TMP + 4, TMP + 5]]
V_EW, V_ER, V_XO = [TMP + 6, TMP + 7], [TMP + 8, TMP + 9], TMP + 10
V_XRES, V_SUM, V_RD = TMP + 12, ACC + 64, XF + 48

S_MA = 0
S_W, S_I, S_J, S_LDSW, S_NONCE = 3, 4, 5, 6, 7
S_LOFF = [8, 9, 10, 11, 12]
S_STEP12, S_X0, S_X1 = 13, 14, 15
S_PROF = 16
SRD_E = 32
SRD_X, SRD_WS, SRD_Q, SRD_L1, SRD_L2, SRD_W1, SRD_W3, SRD_W2, SRD_WO, SRD_OUT = range(36, 76, 4)
S_QST, S_QC = [76, 77, 78], [79, 80, 81]
S_HA, S_FLAG, S_MB = 82, 83, 84
S_CS, S_STAT = [86, 87], 88
S_BOFF, S_WOFF, S_AI, S_AH, S_GM = 89, 90, 91, 92, 93
S_T0, S_T1, S_T2, S_T3 = 94, 95, 96, 97
S_P98 = 98
S_SPIN, S_GN = 100, 101
S_KOFF, S_VOFF = [SRD_Q, SRD_Q + 1, SRD_Q + 2], [SRD_L1, SRD_L1 + 1, SRD_L1 + 2]
S_QOFF, S_OST, S_OFLAG = SRD_Q + 3, SRD_L1 + 3, SRD_L2
S_HLD, S_OLD, S_XOFF = SRD_L2 + 1, SRD_L2 + 2, SRD_L2 + 3
S_KQ = S_X0
S_EST, S_ESTEP = S_P98, S_P98 + 1


def v(i, n=1):
    return f"v{i}" if n == 1 else f"v[{i}:{i + n - 1}]"


def s(i, n=1):
    return f"s{i}" if n == 1 else f"s[{i}:{i + n - 1}]"


def acc(L):
    return ACC + 16 * L


def sblk(b):
    return S16 if b == 16 else SP + 4 * b


class Cfg:
    prof = 0
    stop = 99
    map1 = "4x8"
    n_pre = 10
    n_post = 0
    cap1 = 5
    cap2 = 3
    sigp = 0
    pollp = 4
    sig0 = 9
    poll0 = 13
    pollo = 5
    hbpos = 3


class Gen:
    def __init__(self, cfg):
        self.cfg = cfg
        self.nlab = 0
        self.tail = []

    def lab(self, base):
        self.nlab += 1
        return f"L_{base}_{self.nlab}"

    def stamp(self, k):
        if self.cfg.prof:
            return [f"s_memtime {s(S_PROF + 2 * k, 2)}"]
        return []

    def dma(self, slot, srd, voff, soff, tag, step=None, extra=""):
        ops = [Op(f"s_add_u32 m0, {s(S_LDSW)}, {slot * 8192}")]
        if step is not None:
            ops.append(Op(f"s_add_u32 {s(soff)}, {s(soff)}, {step}"))
        ops.append(Op(f"buffer_load_dwordx4 {v(voff)}, {s(srd, 4)}, {s(soff)} offen {extra} lds".replace("  ", " "), vm=tag))
        return ops

    W_UNITS = [(L, g) for g in range(7) for L in (0, 1, 2)] + [(L, g) for g in range(7) for L in (3, 4)]
    W_SLOT = list(range(8, 20)) + list(range(8, 20)) + [0, 1, 8, 9, 10, 2, 3, 11, 12, 13, 4]
    B_SLOT = [5, 6, 7, 0, 1, 8, 9, 10, 2, 3, 11, 12, 13, 4, 14, 15, 16, 17, 18, 19, 5, 6, 7, 0, 1, 8, 9, 10]
    WO_SLOT = [2, 3, 11, 12, 13, 4, 14, 15]
    AREA = [16 * 8192, 18 * 8192, 6 * 8192]

    def wdma(self, u):
        L, g = self.W_UNITS[u]
        srd = [SRD_Q, SRD_L1, SRD_L2, SRD_W1, SRD_W3][L]
        voff = [V_WQ, V_WL, V_WL, V_WF, V_WF][L]
        step = [64 * 2688, s(S_STEP12), s(S_STEP12), 64 * 3584, 64 * 3584][L]
        return self.dma(self.W_SLOT[u], srd, voff, S_LOFF[L], f"W{u}", step if g else None)

    def xdma(self, g, t):
        return self.dma(2 * (g & 3) + t, SRD_X, V_XD, S_X0 + t, f"X{g}{t}", 128 if g else None)

    def bdma(self, b):
        return self.dma(self.B_SLOT[b], SRD_W2, V_W2, S_BOFF, f"B{b}", 64 * 896 if b else None)

    def wodma(self, b):
        return self.dma(self.WO_SLOT[b], SRD_WO, V_W2, S_WOFF, f"WO{b}", 56 * 896 if b else None)

    def g1_dma_plan(self):
        c = self.cfg
        q = []
        for g in range(7):
            q += [(max(g - 3, 0), g - 1, self.xdma(g, t)) for t in range(2)]
            q += [(max(g - 2, 0) if g > 3 else 0, g - 1, self.wdma(u)) for u in range(3 * g, 3 * g + 3)]
        first = {21: 5, 22: 5, 23: 5, 24: 5, 25: 5, 26: 6, 27: 6, 28: 6, 29: 6, 30: 6, 31: 7, 32: 7, 33: 7, 34: 7}
        for u in range(21, 35):
            q.append((first[u], 6 + (u - 21) // 2, self.wdma(u)))
        for b, e in enumerate((7, 8, 8, 10, 11, 11, 12, 12, 13, 13)):
            q.append((e, 99, self.bdma(b)))
        n0 = c.n_pre + c.n_post
        init = [x[2] for x in q[:n0]]
        q = q[n0:]
        plan = {}
        for G in range(14):
            cap = c.cap1 if G < 7 else c.cap2
            if G == c.pollp + 1:
                cap -= 2
            pick = [x for x in q if x[0] <= G][:cap]
            for x in pick:
                assert G <= x[1], ("late DMA", G, x[2][-1].vm)
                q.remove(x)
            plan[G] = [x[2] for x in pick]
        assert all(x[1] == 99 for x in q)
        plan["rest"] = [x[2] for x in q]
        return init, plan

    def signal(self, soff_ops, soff, vt):
        l = self.lab("sig")
        return [[f"s_cmp_lg_u32 {s(S_W)}, 0", f"s_cbranch_scc1 {l}",
                 f"v_mov_b32 {v(vt)}, {s(S_NONCE)}", "s_mov_b64 exec, 1"] + soff_ops +
                [f"buffer_store_dword {v(vt)}, off, {s(SRD_WS, 4)}, {s(soff)} sc1",
                 "s_mov_b64 exec, -1", f"{l}:"]]

    def signal_g1(self, stage, vt):
        return self.signal([f"s_add_u32 {s(S_T3)}, {s(S_FLAG)}, {stage * 4096}"], S_T3, vt)

    def signal_pre(self):
        l = self.lab("sigp")
        return [[f"s_cmp_lg_u32 {s(S_W)}, 0", f"s_cbranch_scc1 {l}",
                 f"s_lshl_b32 {s(S_T2)}, {s(S_J)}, 8", f"s_lshl_b32 {s(S_T3)}, {s(S_I)}, 2",
                 f"s_add_u32 {s(S_T2)}, {s(S_T2)}, {s(S_T3)}", f"s_add_u32 {s(S_T2)}, {s(S_T2)}, {5 * 4096}",
                 f"s_add_u32 {s(S_T3)}, {s(S_FLAG)}, {4 * 4096}",
                 f"v_mov_b32 {v(TMP)}, {s(S_NONCE)}", f"v_mov_b32 {v(TMP + 1)}, {s(S_T2)}",
                 f"v_writelane_b32 {v(TMP + 1)}, {s(S_T3)}, 0",
                 "s_mov_b64 exec, 3",
                 f"buffer_store_dword {v(TMP)}, {v(TMP + 1)}, {s(SRD_WS, 4)}, 0 offen sc1",
                 "s_mov_b64 exec, -1", f"{l}:"]]

    def poll_text(self, vdst, vaddr, off):
        return f"buffer_load_dword {v(vdst)}, {v(vaddr)}, {s(SRD_WS, 4)}, {off} offen sc1"

    def poll_issue(self, vdst, vaddr, off, tag):
        return Op(self.poll_text(vdst, vaddr, off), vm=tag)

    def poll_check(self, vdst, vaddr, off, tag):
        spin, back = self.lab("spin"), self.lab("back")
        self.tail += [f"{spin}:", f"s_mov_b32 {s(S_SPIN)}, 0", f"{spin}_l:",
                      self.poll_text(vdst, vaddr, off),
                      f"s_add_u32 {s(S_SPIN)}, {s(S_SPIN)}, 1",
                      f"s_cmp_gt_u32 {s(S_SPIN)}, 0x4000", f"s_cbranch_scc1 {spin}_x",
                      "s_waitcnt vmcnt(0)",
                      f"v_cmp_ne_u32 vcc, {s(S_NONCE)}, {v(vdst)}", "s_nop 1",
                      "s_cmp_lg_u64 vcc, 0", f"s_cbranch_scc1 {spin}_l",
                      f"{spin}_x:", "s_waitcnt vmcnt(0)", f"s_branch {back}"]
        return [[Op(f"v_cmp_ne_u32 vcc, {s(S_NONCE)}, {v(vdst)}", nvm=tag),
                 "s_cmp_lg_u64 vcc, 0", f"s_cbranch_scc1 {spin}", f"{back}:"]]

    def barrier(self, nvm=(), nlg=()):
        return Op("s_barrier", nvm=nvm, nlg=nlg)

    def prologue(self, a):
        c = self.cfg
        a("s_cmp_ge_u32 s2, 256\ns_cbranch_scc1 L_end")
        if c.prof:
            a(f"s_memtime {s(S_PROF, 2)}")
        for srd, off in ((SRD_X, 0), (SRD_Q, 8), (SRD_W1, 32), (SRD_W3, 40), (SRD_WS, 72), (SRD_W2, 48), (SRD_WO, 16), (SRD_OUT, 56)):
            a(f"s_load_dwordx2 {s(srd, 2)}, s[0:1], {off}")
        a(f"""
        v_lshrrev_b32 {v(TMP)}, 6, v0
        v_and_b32 {v(V_LANE)}, 63, v0
        v_readfirstlane_b32 {s(S_W)}, {v(TMP)}
        """)
        if c.map1 == "4x8":
            a(f"""
            s_and_b32 {s(S_I)}, s2, 3
            s_lshl_b32 {s(S_I)}, {s(S_I)}, 2
            s_bfe_u32 {s(S_T0)}, s2, 0x20003
            s_add_u32 {s(S_I)}, {s(S_I)}, {s(S_T0)}
            s_bfe_u32 {s(S_J)}, s2, 0x10002
            s_lshl_b32 {s(S_J)}, {s(S_J)}, 3
            s_lshr_b32 {s(S_T0)}, s2, 5
            s_add_u32 {s(S_J)}, {s(S_J)}, {s(S_T0)}
            """)
        elif c.map1 == "8x4":
            a(f"""
            s_and_b32 {s(S_I)}, s2, 1
            s_lshl_b32 {s(S_I)}, {s(S_I)}, 3
            s_bfe_u32 {s(S_T0)}, s2, 0x30003
            s_add_u32 {s(S_I)}, {s(S_I)}, {s(S_T0)}
            s_bfe_u32 {s(S_J)}, s2, 0x20001
            s_lshl_b32 {s(S_J)}, {s(S_J)}, 2
            s_lshr_b32 {s(S_T0)}, s2, 6
            s_add_u32 {s(S_J)}, {s(S_J)}, {s(S_T0)}
            """)
        else:
            a(f"""
            s_and_b32 {s(S_I)}, s2, 7
            s_lshl_b32 {s(S_I)}, {s(S_I)}, 1
            s_bfe_u32 {s(S_T0)}, s2, 0x10003
            s_add_u32 {s(S_I)}, {s(S_I)}, {s(S_T0)}
            s_lshr_b32 {s(S_J)}, s2, 4
            """)
        r8, c8, t2, t3, t4, ve = TMP, TMP + 1, TMP + 2, TMP + 3, TMP + 4, TMP + 5
        for srd, nrec in ((SRD_X, 2048 * 896), (SRD_Q, 448 * 2688), (SRD_W1, 448 * 3584), (SRD_W3, 448 * 3584)):
            a(f"s_mov_b32 {s(srd + 2)}, {nrec}\ns_mov_b32 {s(srd + 3)}, 0x20000")
        a(f"""
        s_lshl_b32 {s(S_LDSW)}, {s(S_W)}, 10
        s_mul_i32 {s(S_X0)}, {s(S_I)}, {128 * 896}
        s_add_u32 {s(S_X1)}, {s(S_X0)}, {64 * 896}
        s_mul_i32 {s(S_T0)}, {s(S_J)}, 3
        s_sub_u32 {s(S_T0)}, {s(S_T0)}, 24
        s_lshl_b32 {s(S_T2)}, {s(S_J)}, 7
        s_cmp_ge_u32 {s(S_J)}, 12
        s_cselect_b32 {s(S_QC[0])}, {s(S_T0)}, {s(S_J)}
        s_mul_i32 {s(S_LOFF[0])}, {s(S_QC[0])}, 112
        s_cselect_b32 {s(S_LOFF[1])}, {s(S_LOFF[0])}, {s(S_T2)}
        s_cselect_b32 {s(S_T1)}, 112, 0
        s_cselect_b32 {s(SRD_L1 + 2)}, {s(SRD_Q + 2)}, {s(SRD_W1 + 2)}
        s_cselect_b32 {s(SRD_L2 + 2)}, {s(SRD_Q + 2)}, {s(SRD_W1 + 2)}
        s_mov_b32 {s(S_STEP12)}, {64 * 3584}
        s_cselect_b32 {s(S_STEP12)}, {64 * 2688}, {s(S_STEP12)}
        s_cselect_b64 vcc, -1, 0
        s_add_u32 {s(S_LOFF[1])}, {s(S_LOFF[1])}, {s(S_T1)}
        s_add_u32 {s(S_LOFF[2])}, {s(S_LOFF[1])}, {s(S_T1)}
        s_add_u32 {s(S_LOFF[3])}, {s(S_T2)}, {12 * 128}
        s_mov_b32 {s(S_LOFF[4])}, {s(S_LOFF[3])}
        s_mov_b32 {s(SRD_L1 + 3)}, 0x20000
        s_mov_b32 {s(SRD_L2 + 3)}, 0x20000
        s_mov_b32 {s(SRD_E + 3)}, 0x20000
        """)
        a(f"""
        v_lshrrev_b32 {v(r8)}, 3, {v(V_LANE)}
        v_and_b32 {v(c8)}, 7, {v(V_LANE)}
        s_lshl_b32 {s(S_T0)}, {s(S_W)}, 3
        v_lshlrev_b32 {v(t2)}, 1, {v(r8)}
        v_and_b32 {v(t2)}, 4, {v(t2)}
        v_xor_b32 {v(t2)}, {v(t2)}, {v(c8)}
        v_add_u32 {v(t3)}, {s(S_T0)}, {v(r8)}
        v_lshrrev_b32 {v(t4)}, 2, {v(t2)}
        v_sub_u32 {v(t4)}, {v(t2)}, {v(t4)}
        v_mul_u32_u24 {v(V_WQ)}, 2688, {v(t3)}
        v_mul_u32_u24 {v(V_WF)}, 3584, {v(t3)}
        v_mul_u32_u24 {v(V_W2)}, 896, {v(t3)}
        v_lshl_add_u32 {v(V_WQ)}, {v(t4)}, 4, {v(V_WQ)}
        v_lshl_add_u32 {v(V_WF)}, {v(t2)}, 4, {v(V_WF)}
        v_bfe_u32 {v(t4)}, {v(t3)}, 1, 3
        v_xor_b32 {v(t4)}, {v(t4)}, {v(c8)}
        v_lshl_add_u32 {v(V_XD)}, {v(t4)}, 4, {v(V_W2)}
        v_lshl_add_u32 {v(V_W2)}, {v(t2)}, 4, {v(V_W2)}
        v_cndmask_b32 {v(V_WL)}, {v(V_WF)}, {v(V_WQ)}, vcc
        """)
        a(f"""
        s_cmp_ge_u32 {s(S_J)}, 12
        s_cselect_b32 {s(S_T0)}, 3, 1
        s_cmp_lt_u32 {s(S_W)}, {s(S_T0)}
        s_cselect_b32 {s(S_T3)}, 1, 0
        s_cselect_b32 {s(SRD_E + 2)}, {s(SRD_Q + 2)}, {s(SRD_W1 + 2)}
        s_movk_i32 {s(S_T1)}, 3584
        s_cselect_b32 {s(S_T1)}, 2688, {s(S_T1)}
        s_cmp_eq_u32 {s(S_W)}, 1
        s_cselect_b32 {s(S_T2)}, {s(S_LOFF[1])}, {s(S_LOFF[0])}
        s_cmp_eq_u32 {s(S_W)}, 2
        s_cselect_b32 {s(S_T2)}, {s(S_LOFF[2])}, {s(S_T2)}
        s_cmp_ge_u32 {s(S_W)}, 3
        s_cselect_b32 {s(S_T2)}, {s(S_LOFF[3])}, {s(S_T2)}
        s_mul_i32 {s(S_ESTEP)}, {s(S_T1)}, 7
        s_mul_i32 {s(S_EST)}, {s(S_ESTEP)}, {s(S_I)}
        s_lshl_b32 {s(S_EST)}, {s(S_EST)}, 2
        s_add_u32 {s(S_EST)}, {s(S_EST)}, {s(S_T2)}
        s_lshl_b32 {s(S_T0)}, {s(S_I)}, 4
        s_add_u32 {s(S_T0)}, {s(S_T0)}, {s(S_J)}
        s_mul_i32 {s(S_T2)}, {s(S_T0)}, {8 * 896}
        s_cmp_eq_u32 {s(S_W)}, 5
        s_cselect_b32 {s(S_EST)}, {s(S_T2)}, {s(S_EST)}
        s_cselect_b32 {s(S_T1)}, 896, {s(S_T1)}
        s_cselect_b32 {s(S_T2)}, 8, 7
        v_lshrrev_b32 {v(t2)}, 2, {v(c8)}
        v_and_b32 {v(t2)}, {s(S_T3)}, {v(t2)}
        v_sub_u32 {v(t2)}, {v(c8)}, {v(t2)}
        v_mul_u32_u24 {v(ve)}, {s(S_T1)}, {v(r8)}
        v_lshl_add_u32 {v(ve)}, {v(t2)}, 4, {v(ve)}
        v_cmp_gt_u32 vcc, {s(S_T2)}, {v(r8)}
        v_mov_b32 {v(t2)}, 0x7ff00000
        v_cndmask_b32 {v(ve)}, {v(t2)}, {v(ve)}, vcc
        s_waitcnt lgkmcnt(0)
        s_load_dword {s(S_NONCE)}, {s(SRD_WS, 2)}, {EPOCH}
        """)
        for srd in (SRD_X, SRD_Q, SRD_W1, SRD_W3):
            a(f"s_and_b32 {s(srd + 1)}, {s(srd + 1)}, 0xffff")
        a(f"""
        s_bitcmp1_b32 {s(S_W)}, 0
        s_cselect_b64 {s(SRD_E, 2)}, {s(SRD_W1, 2)}, {s(SRD_W3, 2)}
        s_cmp_eq_u32 {s(S_T3)}, 1
        s_cselect_b64 {s(SRD_E, 2)}, {s(SRD_Q, 2)}, {s(SRD_E, 2)}
        s_cmp_gt_u32 {s(S_W)}, 5
        s_cbranch_scc1 L_eld_done
        s_cmp_eq_u32 {s(S_W)}, 5
        s_cbranch_scc1 L_eld_row
        """)
        for q in range(4):
            if q:
                a(f"s_add_u32 {s(S_EST)}, {s(S_EST)}, {s(S_ESTEP)}")
            a(f"buffer_load_dwordx4 {v(ACC + 4 * q, 4)}, {v(ve)}, {s(SRD_E, 4)}, {s(S_EST)} offen")
        a("s_branch L_eld_done\nL_eld_row:")
        for q in range(7):
            a(f"buffer_load_dwordx4 {v(ACC + 4 * q, 4)}, {v(ve)}, {s(SRD_X, 4)}, {s(S_EST)} offen offset:{128 * q}")
        a(f"""
        L_eld_done:
        s_cmp_ge_u32 {s(S_J)}, 12
        s_cselect_b64 {s(SRD_L1, 2)}, {s(SRD_Q, 2)}, {s(SRD_W1, 2)}
        s_cselect_b64 {s(SRD_L2, 2)}, {s(SRD_Q, 2)}, {s(SRD_W3, 2)}
        """)
        init, self.plan = self.g1_dma_plan()
        for d in init[:c.n_pre]:
            a(d)
        self.setup_rest(a, r8, c8)
        self.prework(a, r8, c8)
        for d in init[c.n_pre:]:
            a(d)

    def setup_rest(self, a, r8, c8):
        for srd, nrec in ((SRD_WS, WS_RECORDS), (SRD_W2, 1792 * 896), (SRD_WO, 448 * 896), (SRD_OUT, 2048 * 896)):
            a(f"s_and_b32 {s(srd + 1)}, {s(srd + 1)}, 0xffff\ns_mov_b32 {s(srd + 2)}, {nrec}\ns_mov_b32 {s(srd + 3)}, 0x20000")
        cw, rb = S_T0, S_T1
        a(f"""
        s_lshr_b32 {s(cw)}, {s(S_W)}, 2
        s_and_b32 {s(rb)}, {s(S_W)}, 3
        s_cmp_eq_u32 {s(cw)}, 0
        s_mov_b32 {s(S_MA)}, 0
        s_cselect_b32 {s(S_MA + 1)}, -1, 0
        s_cselect_b32 {s(S_MB)}, 0, -1
        s_mov_b32 {s(S_MB + 1)}, 0
        s_lshl_b32 {s(S_T2)}, {s(S_I)}, 2
        s_add_u32 {s(S_T2)}, {s(S_T2)}, {s(rb)}
        s_lshl_b32 {s(S_STAT)}, {s(S_T2)}, 9
        s_add_u32 {s(S_STAT)}, {s(S_STAT)}, {STAT}
        s_mul_i32 {s(S_HA)}, {s(S_T2)}, {H_TB}
        s_mul_i32 {s(S_QST[0])}, {s(S_T2)}, {QKV_TB}
        s_mul_i32 {s(S_T2)}, {s(cw)}, {2 * 28672}
        s_add_u32 {s(S_HA)}, {s(S_HA)}, {s(S_T2)}
        s_lshl_b32 {s(S_T2)}, {s(S_J)}, 10
        s_add_u32 {s(S_HA)}, {s(S_HA)}, {s(S_T2)}
        s_add_u32 {s(S_HA)}, {s(S_HA)}, {HWS}
        s_lshl_b32 {s(S_T2)}, {s(cw)}, 11
        s_add_u32 {s(S_QST[0])}, {s(S_QST[0])}, {s(S_T2)}
        s_lshl_b32 {s(S_T2)}, {s(S_QC[0])}, 12
        s_add_u32 {s(S_QST[0])}, {s(S_QST[0])}, {s(S_T2)}
        s_add_u32 {s(S_QST[0])}, {s(S_QST[0])}, {QKV}
        s_add_u32 {s(S_QST[1])}, {s(S_QST[0])}, 4096
        s_add_u32 {s(S_QST[2])}, {s(S_QST[0])}, 8192
        s_add_u32 {s(S_QC[1])}, {s(S_QC[0])}, 1
        s_add_u32 {s(S_QC[2])}, {s(S_QC[0])}, 2
        """)
        for k in range(3):
            a(f"s_bitcmp1_b32 {s(S_QC[k])}, 3\ns_cselect_b32 {s(S_QC[k])}, 0, 0x3f80")
        a(f"""
        s_lshl_b32 {s(S_FLAG)}, {s(S_I)}, 8
        s_lshl_b32 {s(S_T2)}, {s(S_J)}, 2
        s_add_u32 {s(S_FLAG)}, {s(S_FLAG)}, {s(S_T2)}
        s_lshl_b32 {s(S_CS[0])}, {s(S_J)}, 14
        s_add_u32 {s(S_CS[0])}, {s(S_CS[0])}, {s(S_LDSW)}
        s_add_u32 {s(S_CS[0])}, {s(S_CS[0])}, {CS}
        s_add_u32 {s(S_CS[1])}, {s(S_CS[0])}, 8192
        s_cmp_lt_u32 {s(S_W)}, 2
        s_cselect_b32 {s(S_CS[1])}, {s(S_CS[1])}, {WS_RECORDS}
        s_and_b32 {s(S_T2)}, s2, 7
        s_lshr_b32 {s(S_T3)}, s2, 3
        s_lshl_b32 {s(S_AH)}, {s(S_T2)}, 1
        s_lshl_b32 {s(S_GM)}, {s(S_T2)}, 2
        s_and_b32 {s(S_T2)}, {s(S_T3)}, 1
        s_add_u32 {s(S_AH)}, {s(S_AH)}, {s(S_T2)}
        s_lshr_b32 {s(S_AI)}, {s(S_T3)}, 1
        s_and_b32 {s(S_T2)}, {s(S_T3)}, 3
        s_add_u32 {s(S_GM)}, {s(S_GM)}, {s(S_T2)}
        s_lshr_b32 {s(S_GN)}, {s(S_T3)}, 2
        s_lshl_b32 {s(S_BOFF)}, {s(S_GN)}, 7
        s_mov_b32 {s(S_WOFF)}, {s(S_BOFF)}
        s_cmp_eq_u32 {s(S_GN)}, 7
        s_cselect_b32 {s(SRD_W2 + 2)}, 0, {s(SRD_W2 + 2)}
        """)
        l31, hh, t2, t3 = TMP + 2, TMP + 3, TMP + 4, TMP + 6
        a(f"""
        v_and_b32 {v(l31)}, 31, {v(V_LANE)}
        v_lshrrev_b32 {v(hh)}, 5, {v(V_LANE)}
        v_bfe_u32 {v(t2)}, {v(V_LANE)}, 1, 3
        v_xor_b32 {v(t2)}, {v(t2)}, {v(hh)}
        v_lshlrev_b32 {v(t2)}, 4, {v(t2)}
        v_lshl_add_u32 {v(t2)}, {v(l31)}, 7, {v(t2)}
        s_lshl_b32 {s(S_T2)}, {s(rb)}, 12
        v_add_u32 {v(V_XR[0])}, {s(S_T2)}, {v(t2)}
        v_xor_b32 {v(V_XR[1])}, 32, {v(V_XR[0])}
        v_xor_b32 {v(V_XR[2])}, 64, {v(V_XR[0])}
        v_xor_b32 {v(V_XR[3])}, 0x60, {v(V_XR[0])}
        v_bfe_u32 {v(t2)}, {v(V_LANE)}, 2, 2
        v_lshl_add_u32 {v(t3)}, {v(hh)}, 3, {v(t2)}
        v_lshlrev_b32 {v(t3)}, 7, {v(t3)}
        v_lshrrev_b32 {v(t2)}, 1, {v(t2)}
        v_xor_b32 {v(t2)}, {s(cw)}, {v(t2)}
        v_lshl_add_u32 {v(t3)}, {v(t2)}, 6, {v(t3)}
        v_bfe_u32 {v(hh)}, {v(V_LANE)}, 4, 1
        v_lshl_add_u32 {v(t3)}, {v(hh)}, 5, {v(t3)}
        v_and_b32 {v(t2)}, 3, {v(V_LANE)}
        v_lshl_add_u32 {v(V_WA[0])}, {v(t2)}, 3, {v(t3)}
        v_add_u32 {v(V_WA[1])}, 0x10000, {v(V_WA[0])}
        v_add_u32 {v(V_WA[2])}, 0x20000, {v(V_WA[0])}
        v_lshlrev_b32 {v(V_L16)}, 4, {v(V_LANE)}
        v_add_u32 {v(V_H2)}, 28672, {v(V_L16)}
        s_lshl_b32 {s(S_T2)}, {s(S_I)}, 8
        s_lshl_b32 {s(S_T3)}, {s(S_J)}, 8
        s_add_u32 {s(S_T2)}, {s(S_T2)}, {4 * 4096}
        s_add_u32 {s(S_T3)}, {s(S_T3)}, {5 * 4096}
        s_sub_u32 {s(S_T3)}, {s(S_T3)}, {s(S_T2)}
        v_and_b32 {v(t2)}, 15, {v(V_LANE)}
        v_mul_lo_u32 {v(hh)}, {v(hh)}, {s(S_T3)}
        v_lshl_add_u32 {v(V_POLL)}, {v(t2)}, 2, {v(hh)}
        v_add_u32 {v(V_POLL)}, {s(S_T2)}, {v(V_POLL)}
        """)

    def prework(self, a, r8, c8):
        n = self.cfg.n_pre
        A = [TMP + 8 + e for e in range(8)]
        val, adr = TMP + 16, TMP + 17
        a(f"""
        s_mov_b32 {s(S_EST)}, {WS_RECORDS}
        s_cmp_gt_u32 {s(S_W)}, 5
        s_cbranch_scc1 L_e_none
        s_cmp_eq_u32 {s(S_W)}, 5
        s_cbranch_scc1 L_e_row
        s_movk_i32 {s(S_T0)}, 0x3f80
        s_mov_b32 {s(S_T1)}, 0x3f800000
        s_lshl_b32 {s(S_EST)}, {s(S_J)}, 14
        s_lshl_b32 {s(S_T2)}, {s(S_W)}, 11
        s_add_u32 {s(S_EST)}, {s(S_EST)}, {s(S_T2)}
        s_lshl_b32 {s(S_T2)}, {s(S_I)}, 7
        s_add_u32 {s(S_EST)}, {s(S_EST)}, {s(S_T2)}
        s_add_u32 {s(S_EST)}, {s(S_EST)}, {CS}
        s_bfe_u32 {s(S_T2)}, {s(S_I)}, 0x10001
        s_lshl_b32 {s(S_T2)}, {s(S_T2)}, 6
        v_lshrrev_b32 {v(val)}, 4, {v(V_LANE)}
        v_lshlrev_b32 {v(val)}, 2, {v(val)}
        v_lshl_add_u32 {v(adr)}, {v(c8)}, 4, {v(val)}
        v_xor_b32 {v(adr)}, {s(S_T2)}, {v(adr)}
        """)
        for e in range(8):
            a(f"v_mov_b32 {v(A[e])}, 0")
        for q in range(4):
            a(f"s_waitcnt vmcnt({n + 3 - q})")
            for k in range(4):
                a(f"v_dot2c_f32_bf16 {v(A[2 * k])}, {s(S_T0)}, {v(ACC + 4 * q + k)}")
                a(f"v_dot2c_f32_bf16 {v(A[2 * k + 1])}, {s(S_T1)}, {v(ACC + 4 * q + k)}")
        for e in range(4):
            a(f"v_permlane32_swap_b32 {v(A[e])}, {v(A[e + 4])}")
        for e in range(4):
            a(f"v_add_f32 {v(A[e])}, {v(A[e])}, {v(A[e + 4])}")
        for e in range(2):
            a(f"v_permlane16_swap_b32 {v(A[e])}, {v(A[e + 2])}")
        for e in range(2):
            a(f"v_add_f32 {v(A[e])}, {v(A[e])}, {v(A[e + 2])}")
        for e in range(2):
            a(f"v_add_f32_dpp {v(A[e])}, {v(A[e])}, {v(A[e])} row_ror:8 row_mask:0xf bank_mask:0xf")
        a(f"""
        v_cvt_pk_bf16_f32 {v(val)}, {v(A[0])}, {v(A[1])}
        s_branch L_e_done
        L_e_row:
        s_mov_b32 {s(S_T0)}, 0x3f803f80
        s_lshl_b32 {s(S_EST)}, {s(S_I)}, 4
        s_add_u32 {s(S_EST)}, {s(S_EST)}, {s(S_J)}
        s_lshl_b32 {s(S_EST)}, {s(S_EST)}, 7
        s_add_u32 {s(S_EST)}, {s(S_EST)}, {STAT}
        v_and_b32 {v(val)}, 3, {v(c8)}
        v_lshlrev_b32 {v(adr)}, 4, {v(r8)}
        v_lshl_add_u32 {v(adr)}, {v(val)}, 2, {v(adr)}
        """)
        for e in range(4):
            a(f"v_mov_b32 {v(A[e])}, 0")
        for q in range(7):
            a(f"s_waitcnt vmcnt({n + 6 - q})")
            for k in range(4):
                x = ACC + 4 * q + k
                a(f"v_dot2c_f32_bf16 {v(A[2 * (k & 1)])}, {s(S_T0)}, {v(x)}")
                a(f"v_dot2c_f32_bf16 {v(A[2 * (k & 1) + 1])}, {v(x)}, {v(x)}")
        a(f"v_add_f32 {v(A[0])}, {v(A[0])}, {v(A[2])}\nv_add_f32 {v(A[1])}, {v(A[1])}, {v(A[3])}")
        for pat in ("quad_perm:[1,0,3,2]", "quad_perm:[2,3,0,1]", "row_half_mirror"):
            for e in range(2):
                a(f"v_add_f32_dpp {v(A[e])}, {v(A[e])}, {v(A[e])} {pat} row_mask:0xf bank_mask:0xf")
        inv = 0x3B124925
        a(f"""
        v_mul_f32 {v(A[0])}, {inv}, {v(A[0])}
        v_mul_f32 {v(A[1])}, {inv}, {v(A[1])}
        v_fma_f32 {v(A[1])}, -{v(A[0])}, {v(A[0])}, {v(A[1])}
        v_max_f32 {v(A[1])}, 0, {v(A[1])}
        v_add_f32 {v(A[1])}, 0x3727c5ac, {v(A[1])}
        v_rsq_f32 {v(A[2])}, {v(A[1])}
        v_cvt_pk_bf16_f32 {v(A[0])}, -{v(A[0])}, -{v(A[0])}
        v_cmp_eq_u32 vcc, 2, {v(val)}
        v_mul_f32 {v(A[3])}, 0xbfb8aa3b, {v(A[2])}
        v_cndmask_b32 {v(A[1])}, {v(A[1])}, {v(A[3])}, vcc
        v_cmp_eq_u32 vcc, 1, {v(val)}
        v_cndmask_b32 {v(A[1])}, {v(A[1])}, {v(A[2])}, vcc
        v_cmp_eq_u32 vcc, 0, {v(val)}
        v_cndmask_b32 {v(val)}, {v(A[1])}, {v(A[0])}, vcc
        s_branch L_e_done
        L_e_none:
        v_mov_b32 {v(adr)}, 0
        s_or_b32 {s(S_T0)}, {s(S_I)}, {s(S_J)}
        s_cmp_lg_u32 {s(S_T0)}, 0
        s_cbranch_scc1 L_e_done
        s_and_b32 {s(S_T0)}, {s(S_W)}, 1
        s_lshl_b32 {s(S_T1)}, {s(S_T0)}, 11
        s_add_u32 {s(S_T1)}, {s(S_T1)}, {POISON}
        s_cmp_eq_u32 {s(S_T0)}, 0
        s_cselect_b32 {s(S_T2)}, 0, 0xf149
        s_cselect_b32 {s(S_T3)}, 0xf149, 0
        v_cmp_gt_u32 vcc, 32, {v(V_LANE)}
        v_mov_b32 {v(A[0])}, {s(S_T2)}
        v_mov_b32 {v(A[6])}, {s(S_T3)}
        v_cndmask_b32 {v(A[0])}, 0, {v(A[0])}, vcc
        v_cndmask_b32 {v(A[6])}, {v(A[6])}, 0, vcc
        """)
        for e in (1, 2, 3, 4, 5, 7):
            a(f"v_mov_b32 {v(A[e])}, 0")
        a(f"""
        buffer_store_dwordx4 {v(A[0], 4)}, {v(V_L16)}, {s(SRD_WS, 4)}, {s(S_T1)} offen sc1
        buffer_store_dwordx4 {v(A[4], 4)}, {v(V_L16)}, {s(SRD_WS, 4)}, {s(S_T1)} offen offset:1024 sc1
        L_e_done:
        s_nop 1
        """)
        a(Op(f"buffer_store_dword {v(val)}, {v(adr)}, {s(SRD_WS, 4)}, {s(S_EST)} offen sc1", vm="E"))

    SEQ = ([(3 * g + L, k) for g in range(7) for k in range(4) for L in range(3)] + [(None, L) for L in range(5)] +
           [(21 + 2 * g + L, k) for g in range(7) for k in range(4) for L in range(2)])
    NB = [12 * g + 9 for g in range(7)] + [89 + 8 * g + 5 for g in range(7)]

    def g1_wread(self, n):
        u, k = self.SEQ[n]
        slot = 6 if u is None else self.W_SLOT[u]
        off = (slot & 7) * 8192 + k * 2048
        d = WF + 4 * (n & 3)
        return [Op(f"ds_read_b64_tr_b16 {v(d, 2)}, {v(V_WA[slot >> 3])} offset:{off}", lg=f"w{n}a"),
                Op(f"ds_read_b64_tr_b16 {v(d + 2, 2)}, {v(V_WA[slot >> 3])} offset:{off + 512}", lg=f"w{n}")]

    def g1_mfma(self, n):
        u, k = self.SEQ[n]
        if u is None:
            L, b, c, tags = k, V_MU, ("0" if k >= 3 else v(acc(k), 16)), (f"w{n}",)
        else:
            L, g = self.W_UNITS[u]
            b, c, tags = XF + 16 * g + 4 * k, ("0" if (u < 3 and k == 0) else v(acc(L), 16)), (f"w{n}", f"xf{g}{k}")
        return Op(f"v_mfma_f32_32x32x16_bf16 {v(acc(L), 16)}, {v(WF + 4 * (n & 3), 4)}, {v(b, 4)}, {c}", nlg=tags)

    def xf_read(self, g, k):
        return Op(f"ds_read_b128 {v(XF + 16 * g + 4 * k, 4)}, {v(V_XR[k])} offset:{(g & 3) * 16384}", lg=f"xf{g}{k}")

    def g1_barrier(self, G, extra=()):
        if G < 6:
            need = [f"X{G + 1}0", f"X{G + 1}1"] + [f"W{u}" for u in range(3 * G + 3, 3 * G + 6)]
        elif G == 6:
            need = ["A0", "A1", "W21", "W22"]
        else:
            need = [f"W{u}" for u in (9 + 2 * G, 10 + 2 * G) if u < 35]
        return self.barrier(nvm=need + list(extra))

    def g1_range(self, G):
        return range(self.NB[G - 1] if G else 0, self.NB[G])

    def g1_emit(self, a, rng, side, valu, bars):
        k = 0
        for idx, n in enumerate(rng):
            if n not in bars or n != rng[0] or n == 0:
                a(self.g1_mfma(n))
            if n + 3 < len(self.SEQ):
                a(self.g1_wread(n + 3))
            a(side.get(n, []))
            tgt = (len(valu) * (idx + 1) + len(rng) - 1) // len(rng)
            while k < tgt:
                a(valu[k]); k += 1

    @staticmethod
    def spread(side, rng, items, first=1):
        if not items:
            return
        span = len(rng) - first
        for q, it in enumerate(items):
            side.setdefault(rng[first + (q * span) // len(items)], []).append(it)

    def gemm1_pass1(self, a):
        c = self.cfg
        a(f"""
        s_waitcnt lgkmcnt(0)
        s_mul_i32 {s(S_NONCE)}, {s(S_NONCE)}, 0x41c64e6d
        s_add_u32 {s(S_NONCE)}, {s(S_NONCE)}, 0x3039
        """)
        a(self.barrier(nvm=("X00", "X01", "W0", "W1", "W2")))
        a(self.stamp(1))
        a(self.xf_read(0, 0))
        for n in range(3):
            a(self.g1_wread(n))
        for k in range(1, 4):
            a(self.xf_read(0, k))
        for G in range(8):
            rng = self.g1_range(G)
            if G == 7:
                rng = range(rng[0], 89)
            side, valu = {}, []
            if 1 <= G <= 6:
                for k in range(4):
                    side.setdefault(rng[(0, 1, 3, 5)[k]], []).append(self.xf_read(G, k))
            dm = list(self.plan[G]) if G < 7 else self.plan[7][:2]
            if G == c.sigp + 1:
                side.setdefault(rng[0], []).append(self.signal_pre())
            if G == c.pollp:
                side.setdefault(rng[0], []).append(self.poll_issue(TMP + 2, V_POLL, 0, "pp"))
            if G == c.pollp + 1:
                side.setdefault(rng[0], []).append(self.poll_check(TMP + 2, V_POLL, 0, "pp"))
                side[rng[0]].append([f"v_and_b32 {v(TMP + 3)}, 0x1f0, {v(V_L16)}",
                                     Op(f"buffer_load_dwordx4 {v(V_REC, 4)}, {v(TMP + 3)}, {s(SRD_WS, 4)}, {s(S_STAT)} offen sc1", vm="rec")])
                dm = [self.dma(6 + t, SRD_WS, V_L16, S_CS[t], f"A{t}", extra="sc1") for t in range(2)] + dm
            if G == 6:
                valu = self.late_scalars()
            if G == 7:
                side.setdefault(rng[0], []).append([Op(f"v_mov_b32 {v(V_MU + q)}, {v(V_REC)}", nvm="rec") for q in range(4)])
                valu = self.attn_addr()
            self.spread(side, rng, dm)
            self.g1_emit(a, rng, side, valu, self.NB)
            if G < 7:
                a(self.g1_mfma(self.NB[G]))
                a(self.g1_barrier(G, ["E"] if G == c.sigp else []))
        a(self.stamp(2))

    def late_scalars(self):
        wh, wl = S_T0, S_T1
        t = f"""
        s_lshr_b32 {s(wh)}, {s(S_W)}, 1
        s_and_b32 {s(wl)}, {s(S_W)}, 1
        s_lshl_b32 {s(S_T2)}, {s(S_AI)}, 2
        s_add_u32 {s(S_T2)}, {s(S_T2)}, {s(wh)}
        s_mul_i32 {s(S_QOFF)}, {s(S_T2)}, {QKV_TB}
        s_lshl_b32 {s(S_OST)}, {s(S_T2)}, 15
        s_lshl_b32 {s(S_T2)}, {s(S_AH)}, 11
        s_add_u32 {s(S_QOFF)}, {s(S_QOFF)}, {s(S_T2)}
        s_add_u32 {s(S_QOFF)}, {s(S_QOFF)}, {QKV}
        s_lshl_b32 {s(S_T2)}, {s(wl)}, 10
        s_add_u32 {s(S_KOFF[2])}, {s(S_QOFF)}, {s(S_T2)}
        s_add_u32 {s(S_KOFF[2])}, {s(S_KOFF[2])}, {64 * 512}
        s_add_u32 {s(S_VOFF[2])}, {s(S_KOFF[2])}, {64 * 512}
        s_and_b32 {s(S_T3)}, {s(S_AH)}, 1
        s_lshl_b32 {s(S_T0)}, {s(S_T3)}, 11
        s_add_u32 {s(S_T2)}, {s(S_T2)}, {s(S_T0)}
        s_add_u32 {s(S_T2)}, {s(S_T2)}, {POISON}
        s_sub_u32 {s(S_KOFF[1])}, {s(S_KOFF[2])}, {4 * QKV_TB}
        s_sub_u32 {s(S_VOFF[1])}, {s(S_VOFF[2])}, {4 * QKV_TB}
        s_sub_u32 {s(S_KOFF[0])}, {s(S_KOFF[2])}, {8 * QKV_TB}
        s_sub_u32 {s(S_VOFF[0])}, {s(S_VOFF[2])}, {8 * QKV_TB}
        s_cmp_ge_u32 {s(S_AI)}, 1 | s_cselect_b32 {s(S_KOFF[1])}, {s(S_KOFF[1])}, {s(S_T2)} | s_cselect_b32 {s(S_VOFF[1])}, {s(S_VOFF[1])}, {s(S_T2)}
        s_cmp_ge_u32 {s(S_AI)}, 2 | s_cselect_b32 {s(S_KOFF[0])}, {s(S_KOFF[0])}, {s(S_T2)} | s_cselect_b32 {s(S_VOFF[0])}, {s(S_VOFF[0])}, {s(S_T2)}
        s_lshl_b32 {s(S_T2)}, {s(wl)}, 8
        s_add_u32 {s(S_QOFF)}, {s(S_QOFF)}, {s(S_T2)}
        s_add_u32 {s(S_OST)}, {s(S_OST)}, {s(S_T2)}
        s_lshl_b32 {s(S_T2)}, {s(S_T3)}, 14
        s_add_u32 {s(S_OST)}, {s(S_OST)}, {s(S_T2)}
        s_lshr_b32 {s(S_T2)}, {s(S_AH)}, 1
        s_lshl_b32 {s(S_T2)}, {s(S_T2)}, 10
        s_add_u32 {s(S_OST)}, {s(S_OST)}, {s(S_T2)}
        s_add_u32 {s(S_OST)}, {s(S_OST)}, {OWS}
        s_lshl_b32 {s(S_OFLAG)}, {s(S_AI)}, 8
        s_lshl_b32 {s(S_T2)}, {s(S_AH)}, 2
        s_add_u32 {s(S_OFLAG)}, {s(S_OFLAG)}, {s(S_T2)}
        s_add_u32 {s(S_OFLAG)}, {s(S_OFLAG)}, {3 * 4096}
        s_and_b32 {s(S_KQ)}, {s(S_W)}, 3
        s_lshr_b32 {s(S_T0)}, {s(S_W)}, 2
        s_lshl_b32 {s(S_T1)}, {s(S_GM)}, 1
        s_add_u32 {s(S_T1)}, {s(S_T1)}, {s(S_T0)}
        s_mul_i32 {s(S_HLD)}, {s(S_T1)}, {H_TB}
        s_mul_i32 {s(S_T2)}, {s(S_KQ)}, 28672
        s_add_u32 {s(S_HLD)}, {s(S_HLD)}, {s(S_T2)}
        s_add_u32 {s(S_HLD)}, {s(S_HLD)}, {HWS}
        s_lshl_b32 {s(S_OLD)}, {s(S_T1)}, 15
        s_lshl_b32 {s(S_T2)}, {s(S_KQ)}, 13
        s_add_u32 {s(S_OLD)}, {s(S_OLD)}, {s(S_T2)}
        s_add_u32 {s(S_OLD)}, {s(S_OLD)}, {OWS}
        s_mul_i32 {s(S_XOFF)}, {s(S_T1)}, {32 * 896}
        s_lshl_b32 {s(S_T2)}, {s(S_GN)}, 7
        s_add_u32 {s(S_XOFF)}, {s(S_XOFF)}, {s(S_T2)}
        s_lshl_b32 {s(S_T2)}, {s(S_KQ)}, 5
        s_add_u32 {s(S_XOFF)}, {s(S_XOFF)}, {s(S_T2)}
        """
        return [[x.strip() for x in l.split("|")] for l in t.strip().split("\n")]

    def attn_addr(self):
        g, l15, t0, t1, t2 = TMP + 4, TMP + 5, TMP + 6, TMP + 7, TMP + 8
        t = f"""
        v_lshrrev_b32 {v(g)}, 4, {v(V_LANE)}
        v_and_b32 {v(l15)}, 15, {v(V_LANE)}
        s_lshr_b32 {s(S_T0)}, {s(S_W)}, 1 | s_lshl_b32 {s(S_T0)}, {s(S_T0)}, 11 | s_and_b32 {s(S_T1)}, {s(S_W)}, 1 | s_lshl_b32 {s(S_T2)}, {s(S_T1)}, 8
        s_add_u32 {s(S_T0)}, {s(S_T0)}, {s(S_T2)} | s_add_u32 {s(S_T0)}, {s(S_T0)}, {14 * 8192} | s_mul_i32 {s(S_T1)}, {s(S_T1)}, 1536 | s_add_u32 {s(S_T1)}, {s(S_T1)}, 256
        v_lshlrev_b32 {v(t0)}, 4, {v(l15)}
        v_lshl_add_u32 {v(V_QLD)}, {v(g)}, 9, {v(t0)}
        v_add_u32 {v(V_KE)}, {s(S_T0)}, {v(V_QLD)}
        v_add_u32 {v(V_KO)}, {s(S_T1)}, {v(V_KE)}
        v_lshrrev_b32 {v(t1)}, 5, {v(V_LANE)}
        v_lshlrev_b32 {v(t2)}, 7, {v(t1)}
        v_xor_b32 {v(V_VD)}, {v(t2)}, {v(V_L16)}
        v_lshl_add_u32 {v(t0)}, {v(t1)}, 13, {v(t0)}
        v_and_b32 {v(t1)}, 1, {v(g)}
        v_lshl_add_u32 {v(V_OSTV)}, {v(t1)}, 9, {v(t0)}
        v_bfe_u32 {v(t0)}, {v(V_LANE)}, 1, 1
        v_lshrrev_b32 {v(t1)}, 2, {v(V_LANE)}
        v_lshlrev_b32 {v(t2)}, 3, {v(t0)}
        v_xor_b32 {v(t1)}, {v(t1)}, {v(t2)}
        v_lshlrev_b32 {v(t1)}, 4, {v(t1)}
        v_lshl_add_u32 {v(t1)}, {v(t0)}, 9, {v(t1)}
        v_and_b32 {v(t0)}, 1, {v(V_LANE)}
        v_lshl_add_u32 {v(t1)}, {v(t0)}, 3, {v(t1)}
        s_add_u32 {s(S_T0)}, {s(S_T0)}, {3 * 8192} | v_add_u32 {v(V_VE)}, {s(S_T0)}, {v(t1)}
        v_add_u32 {v(V_VO)}, {s(S_T1)}, {v(V_VE)}
        v_min_u32 {v(t0)}, 2, {v(g)}
        s_sub_u32 {s(S_T2)}, {s(S_AI)}, 2 | v_add_u32 {v(t0)}, {s(S_T2)}, {v(t0)}
        v_max_i32 {v(t0)}, 0, {v(t0)}
        v_lshlrev_b32 {v(t0)}, 8, {v(t0)}
        v_lshl_add_u32 {v(V_POLL)}, {v(l15)}, 2, {v(t0)}
        """
        return [[x.strip() for x in l.split("|")] for l in t.strip().split("\n")]

    def attn_masks(self):
        t0, t1 = XF + 4, XF + 5
        ops = [f"v_lshrrev_b32 {v(t0)}, 2, {v(V_LANE)}", f"v_and_b32 {v(t0)}, 12, {v(t0)}",
               f"v_and_b32 {v(t1)}, 15, {v(V_LANE)}", f"v_sub_u32 {v(t0)}, {v(t1)}, {v(t0)}",
               f"v_mov_b32 {v(t1)}, {NEG_BIG}"]
        for r in range(4):
            ops.append([f"v_cmp_gt_i32 vcc, {r}, {v(t0)}",
                        f"v_cndmask_b32 {v(sblk(0) + r)}, {v(t1)}, 0, vcc",
                        f"v_cndmask_b32 {v(sblk(16) + r)}, 0, {v(t1)}, vcc"])
        return ops

    def epi_qkv(self, L, k, tag):
        A = acc(L)
        P = TMP + 8 * (k & 1)
        vc = TMP + 16
        ops = [Op(f"v_mov_b32 {v(vc)}, {s(S_QC[k])}")]
        for q in range(8):
            ops.append(Op(f"v_mul_f32 {v(A + 2 * q)}, {v(V_REC + 1)}, {v(A + 2 * q)}"))
            ops.append(Op(f"v_mul_f32 {v(A + 2 * q + 1)}, {v(V_REC + 1)}, {v(A + 2 * q + 1)}"))
        for q in range(8):
            ops.append(Op(f"v_cvt_pk_bf16_f32 {v(P + q)}, {v(A + 2 * q)}, {v(A + 2 * q + 1)}"))
        ops += [Op(f"v_cndmask_b32 {v(P)}, {v(P)}, {v(vc)}, {s(S_MB, 2)}"),
                Op(f"v_cndmask_b32 {v(P + 1)}, {v(P + 1)}, 0, {s(S_MB, 2)}"),
                Op(f"v_cndmask_b32 {v(P + 6)}, {v(P + 6)}, {v(vc)}, {s(S_MA, 2)}"),
                Op(f"v_cndmask_b32 {v(P + 7)}, {v(P + 7)}, 0, {s(S_MA, 2)}")]
        for h2 in range(2):
            p = P + 4 * h2
            ops.append(Op(f"v_permlane32_swap_b32 {v(p)}, {v(p + 2)}"))
            ops.append(Op(f"v_permlane32_swap_b32 {v(p + 1)}, {v(p + 3)}"))
        for h2 in range(2):
            ops.append(Op(f"buffer_store_dwordx4 {v(P + 4 * h2, 4)}, {v(V_L16)}, {s(SRD_WS, 4)}, {s(S_QST[k])} offen offset:{1024 * h2} sc1",
                          vm=f"{tag}{h2}"))
        return ops

    def epi_h(self, Lg, Lu, tag):
        G, U = acc(Lg), acc(Lu)
        ops = []
        for b in range(4):
            e = TMP + 16 + 4 * (b & 1)
            out = TMP + 8 * (b >> 1)
            r = range(4 * b, 4 * b + 4)
            ops += [Op(f"v_mul_f32 {v(e + q)}, {v(V_REC + 2)}, {v(G + i)}") for q, i in enumerate(r)]
            ops += [Op(f"v_exp_f32 {v(e + q)}, {v(e + q)}") for q in range(4)]
            ops += [Op(f"v_mul_f32 {v(G + i)}, {v(G + i)}, {v(U + i)}") for i in r]
            ops += [Op(f"v_fma_f32 {v(e + q)}, {v(e + q)}, {v(V_REC + 3)}, {v(V_REC + 3)}") for q in range(4)]
            ops += [Op(f"v_rcp_f32 {v(e + q)}, {v(e + q)}") for q in range(4)]
            ops += [Op(f"v_mul_f32 {v(G + i)}, {v(G + i)}, {v(e + q)}") for q, i in enumerate(r)]
            o = out + 2 * (b & 1)
            ops += [Op(f"v_cvt_pk_bf16_f32 {v(o)}, {v(G + 4 * b)}, {v(G + 4 * b + 1)}"),
                    Op(f"v_cvt_pk_bf16_f32 {v(o + 1)}, {v(G + 4 * b + 2)}, {v(G + 4 * b + 3)}")]
            if b & 1:
                va = V_L16 if b == 1 else V_H2
                ops.append(Op(f"buffer_store_dwordx4 {v(out, 4)}, {v(va)}, {s(SRD_WS, 4)}, {s(S_HA)} offen sc1", vm=f"{tag}{b >> 1}"))
        return ops

    def gemm1_pass2(self, a, typec):
        c = self.cfg
        if typec:
            epi = self.epi_qkv(0, 0, "q") + self.epi_qkv(1, 1, "q") + self.epi_qkv(2, 2, "q") + self.attn_masks()
            n = len(epi) - 9
            cut = [0, 30, 75, n, n, len(epi), len(epi), len(epi), len(epi)]
        else:
            epi = self.epi_qkv(0, 0, "q") + self.epi_h(1, 2, "ha") + self.attn_masks()
            cut = [0, 18, 40, 62, 84, 106, 128, len(epi) - 3, len(epi)]
        for G in range(7, 15):
            lo = 89 if G == 7 else self.NB[G - 1]
            hi = self.NB[G] if G < 14 else len(self.SEQ)
            rng = range(lo, hi)
            side = {}
            dm = self.plan[7][2:] if G == 7 else (self.plan[G] if G < 14 else [])
            valu = epi[cut[G - 7]:cut[G - 6]]
            if G == 7:
                valu = [[]] * 2 + valu
            if G == c.sig0 + 1:
                side.setdefault(rng[0], []).append(self.signal_g1(0, XF + 1))
            if G == c.poll0:
                side.setdefault(rng[0], []).append(self.poll_issue(XF, V_POLL, 0, "p0"))
            self.spread(side, rng, dm, 0 if G == 7 else 1)
            self.g1_emit(a, rng, side, valu, self.NB)
            if G < 14:
                a(self.g1_mfma(self.NB[G]))
                a(self.g1_barrier(G, ["q1"] if G == c.sig0 else []))

    def h_load(self, gr):
        ops = []
        if gr and gr % 4 == 0:
            ops.append(Op(f"s_add_u32 {s(S_HLD)}, {s(S_HLD)}, 4096"))
        ops.append(Op(f"buffer_load_dwordx4 {v(XF + 4 * gr, 4)}, {v(V_L16)}, {s(SRD_WS, 4)}, {s(S_HLD)} offen offset:{1024 * (gr % 4)} sc1",
                      vm=f"h{gr}"))
        return ops

    def k_read(self, b):
        return Op(f"ds_read_b128 {v(WF + 4 * (b & 3), 4)}, {v(V_KO if b & 1 else V_KE)} offset:{(b >> 1) * 2048}", lg=f"k{b}")

    def v_read(self, m):
        p, dh = m >> 1, m & 1
        d = WF + 4 * (m & 3)
        ops = [Op(f"ds_read_b64_tr_b16 {v(d, 2)}, {v(V_VE)} offset:{p * 2048 + dh * 1024}", lg=f"v{m}" if p == 8 else f"v{m}a")]
        if p < 8:
            ops.append(Op(f"ds_read_b64_tr_b16 {v(d + 2, 2)}, {v(V_VO)} offset:{p * 2048 + dh * 1024}", lg=f"v{m}"))
        return ops

    def pv_mfma(self, m):
        p, dh = m >> 1, m & 1
        o = v(OACC + 4 * dh, 4)
        if p < 8:
            return Op(f"v_mfma_f32_16x16x32_bf16 {o}, {v(WF + 4 * (m & 3), 4)}, {v(sblk(2 * p), 4)}, {'0' if p == 0 else o}", nlg=f"v{m}")
        return Op(f"v_mfma_f32_16x16x16_bf16 {o}, {v(WF + 4 * (m & 3), 2)}, {v(S16, 2)}, {o}", nlg=f"v{m}")

    def attention_entry(self, a):
        a(self.stamp(3))
        a(self.poll_check(XF, V_POLL, 0, "p0"))
        l = self.lab("epoch")
        a(f"""
        s_or_b32 {s(S_T0)}, s2, {s(S_W)}
        s_cmp_lg_u32 {s(S_T0)}, 0
        s_cbranch_scc1 {l}
        v_mov_b32 {v(XF + 1)}, {s(S_NONCE)}
        s_mov_b32 {s(S_T0)}, {EPOCH}
        s_mov_b64 exec, 1
        buffer_store_dword {v(XF + 1)}, off, {s(SRD_WS, 4)}, {s(S_T0)} sc1
        s_mov_b64 exec, -1
        {l}:
        s_add_u32 {s(S_HA)}, {s(S_HA)}, {12 * 1024}
        """)
        req = [[Op(f"buffer_load_dwordx4 {v(V_Q, 4)}, {v(V_QLD)}, {s(SRD_WS, 4)}, {s(S_QOFF)} offen sc1", vm="Q")]]
        req += [self.dma(14 + t, SRD_WS, V_L16, S_KOFF[t], f"K{t}", extra="sc1") for t in range(3)]
        req += [self.dma(17 + t, SRD_WS, V_VD, S_VOFF[t], f"V{t}", extra="sc1") for t in range(3)]
        req += self.plan["rest"] + [self.bdma(10), self.bdma(11)]
        epi = self.epi_h(3, 4, "hb")
        a(req[:2])
        a(interleave([[o] for o in epi], req[2:], 0, 50))
        a(f"""
        v_and_b32 {v(V_GP)}, 15, {v(V_LANE)}
        v_lshlrev_b32 {v(V_GP)}, 2, {v(V_GP)}
        s_lshr_b32 {s(S_T0)}, {s(S_GM)}, 1
        s_lshl_b32 {s(S_T0)}, {s(S_T0)}, 8
        s_add_u32 {s(S_T0)}, {s(S_T0)}, {2 * 4096}
        v_add_u32 {v(V_GP)}, {s(S_T0)}, {v(V_GP)}
        """)

    def attention(self, a):
        c = self.cfg
        a(self.barrier(nvm=("Q", "K0", "K1", "K2", "V0", "V1", "V2")))
        a(self.stamp(4))
        for b in range(3):
            a(self.k_read(b))
        late = [self.bdma(12), self.bdma(13)]
        for b in range(17):
            cin = v(sblk(b), 4) if b in (0, 16) else "0"
            a(Op(f"v_mfma_f32_16x16x32_bf16 {v(sblk(b), 4)}, {v(WF + 4 * (b & 3), 4)}, {v(V_Q, 4)}, {cin}", nlg=f"k{b}"))
            if b + 3 < 17:
                a(self.k_read(b + 3))
            if b in (2, 8):
                a(late.pop(0))
        for m in range(3):
            a(self.v_read(m))
        m0, m1 = V_PT, V_PT + 1
        sc = [sblk(b) + r for b in range(17) for r in range(4)]
        a(f"v_max3_f32 {v(m0)}, {v(sc[0])}, {v(sc[1])}, {v(sc[2])}")
        a(f"v_max3_f32 {v(m1)}, {v(sc[3])}, {v(sc[4])}, {v(sc[5])}")
        for q in range(31):
            mm = m0 if q % 2 == 0 else m1
            a(f"v_max3_f32 {v(mm)}, {v(sc[6 + 2 * q])}, {v(sc[7 + 2 * q])}, {v(mm)}")
        a(self.barrier(nvm=("hb0", "hb1")))
        a(self.signal_g1(2, V_PT + 2))
        a(f"""
        v_max_f32 {v(m0)}, {v(m0)}, {v(m1)}
        v_mov_b32 {v(m1)}, {v(m0)}
        v_permlane32_swap_b32 {v(m0)}, {v(m1)}
        v_max_f32 {v(m0)}, {v(m0)}, {v(m1)}
        v_mov_b32 {v(m1)}, {v(m0)}
        v_permlane16_swap_b32 {v(m0)}, {v(m1)}
        v_max_f32 {v(m0)}, {v(m0)}, {v(m1)}
        s_mov_b32 {s(S_T0)}, {C_EXP}
        v_mul_f32 {v(m0)}, -{v(m0)}, {s(S_T0)}
        """)
        hl = [self.h_load(g) for g in range(28)]
        for p in range(9):
            r = list(range(sblk(2 * p), sblk(2 * p) + (8 if p < 8 else 4)))
            ops = [f"v_fma_f32 {v(x)}, {v(x)}, {s(S_T0)}, {v(m0)}" for x in r]
            ops += [f"v_exp_f32 {v(x)}, {v(x)}" for x in r]
            ops += [f"v_cvt_pk_bf16_f32 {v(r[0] + q)}, {v(r[2 * q])}, {v(r[2 * q + 1])}" for q in range(len(r) // 2)]
            side = []
            if p >= 1:
                for m in (2 * p - 2, 2 * p - 1):
                    side.append([self.pv_mfma(m)] + (self.v_read(m + 3) if m + 3 < 18 else []))
            if p == c.hbpos - 1:
                side.append(self.poll_issue(V_PT + 2, V_GP, 0, "ph"))
            if p == c.hbpos:
                side.append(self.poll_check(V_PT + 2, V_GP, 0, "ph"))
            if p >= c.hbpos and c.stop > 2:
                k = (28 + 8 - c.hbpos) // (9 - c.hbpos)
                side += hl[:k]
                hl = hl[k:]
            a(interleave([[o] for o in ops], side, 2))
        a(self.pv_mfma(16))
        a(self.pv_mfma(17))
        if c.stop > 2:
            a(hl)
        le, lj = self.lab("even"), self.lab("den")
        t0, t1 = V_PT, V_PT + 1
        a(f"""
        s_bitcmp0_b32 {s(S_AH)}, 0
        s_cbranch_scc1 {le}
        s_nop 7
        v_mov_b32 {v(t0)}, {v(OACC)}
        v_mov_b32 {v(t1)}, {v(OACC)}
        s_mov_b64 vcc, 0xffff
        v_permlane32_swap_b32 {v(t0)}, {v(t1)}
        v_cndmask_b32 {v(OACC)}, {v(OACC)}, 0, vcc
        v_mov_b32 {v(t1)}, {v(t0)}
        s_nop 1
        v_permlane16_swap_b32 {v(t0)}, {v(t1)}
        s_branch {lj}
        {le}:
        s_nop 7
        v_mov_b32 {v(t0)}, {v(OACC + 4)}
        v_mov_b32 {v(t1)}, {v(OACC + 4)}
        s_mov_b32 vcc_lo, 0
        s_mov_b32 vcc_hi, 0xffff0000
        v_permlane32_swap_b32 {v(t1)}, {v(t0)}
        v_cndmask_b32 {v(OACC + 4)}, {v(OACC + 4)}, 0, vcc
        v_mov_b32 {v(t1)}, {v(t0)}
        s_nop 1
        v_permlane16_swap_b32 {v(t1)}, {v(t0)}
        {lj}:
        s_nop 1
        v_rcp_f32 {v(t0)}, {v(t0)}
        """)
        for q in range(8):
            a(f"v_mul_f32 {v(OACC + q)}, {v(t0)}, {v(OACC + q)}")
        for q in range(4):
            a(f"v_cvt_pk_bf16_f32 {v(OACC + q)}, {v(OACC + 2 * q)}, {v(OACC + 2 * q + 1)}")
        a(f"v_permlane32_swap_b32 {v(OACC)}, {v(OACC + 2)}\nv_permlane32_swap_b32 {v(OACC + 1)}, {v(OACC + 3)}")
        a(Op(f"buffer_store_dwordx4 {v(OACC, 4)}, {v(V_OSTV)}, {s(SRD_WS, 4)}, {s(S_OST)} offen sc1", vm="o"))
        a(self.stamp(5))

    def g3_addr(self):
        hh, t2, t3, t4 = TMP + 16, TMP + 17, TMP + 18, TMP + 19
        t = f"""
        v_lshrrev_b32 {v(hh)}, 5, {v(V_LANE)}
        v_bfe_u32 {v(t2)}, {v(V_LANE)}, 2, 2
        v_lshl_add_u32 {v(t3)}, {v(hh)}, 2, {v(t2)}
        s_lshl_b32 {s(S_T0)}, {s(S_KQ)}, 4
        v_add_u32 {v(t3)}, {s(S_T0)}, {v(t3)}
        v_lshlrev_b32 {v(t3)}, 7, {v(t3)}
        v_lshrrev_b32 {v(t2)}, 1, {v(t2)}
        v_lshl_add_u32 {v(t3)}, {v(t2)}, 6, {v(t3)}
        v_bfe_u32 {v(t2)}, {v(V_LANE)}, 4, 1
        v_lshl_add_u32 {v(t3)}, {v(t2)}, 5, {v(t3)}
        v_and_b32 {v(t2)}, 3, {v(V_LANE)}
        v_lshl_add_u32 {v(V_GA[0][0])}, {v(t2)}, 3, {v(t3)}
        v_xor_b32 {v(V_GA[0][1])}, 64, {v(V_GA[0][0])}
        v_add_u32 {v(V_GA[1][0])}, 0x10000, {v(V_GA[0][0])}
        v_add_u32 {v(V_GA[1][1])}, 0x10000, {v(V_GA[0][1])}
        v_add_u32 {v(V_GA[2][0])}, 0x20000, {v(V_GA[0][0])}
        v_add_u32 {v(V_GA[2][1])}, 0x20000, {v(V_GA[0][1])}
        """
        return [l.strip() for l in t.strip().split("\n")]

    def g3_addr2(self):
        hh, t2 = TMP + 16, TMP + 17
        t = f"""
        s_lshr_b32 {s(S_T0)}, {s(S_W)}, 2
        s_lshl_b32 {s(S_T0)}, {s(S_T0)}, 13
        v_add_u32 {v(V_EW[0])}, {s(S_T0)}, {v(V_L16)}
        v_add_u32 {v(V_EW[1])}, 0x20000, {v(V_EW[0])}
        s_lshl_b32 {s(S_T0)}, {s(S_KQ)}, 11
        v_add_u32 {v(V_ER[0])}, {s(S_T0)}, {v(V_EW[0])}
        v_add_u32 {v(V_ER[1])}, {s(S_T0)}, {v(V_EW[1])}
        v_and_b32 {v(t2)}, 31, {v(V_LANE)}
        v_mul_u32_u24 {v(t2)}, 896, {v(t2)}
        v_lshl_add_u32 {v(V_XO)}, {v(hh)}, 4, {v(t2)}
        """
        return [l.strip() for l in t.strip().split("\n")]

    def g3_read(self, n):
        gi, ch = n >> 1, n & 1
        slot = self.B_SLOT[gi] if gi < 28 else self.WO_SLOT[gi - 28]
        off = (slot & 7) * 8192
        d = WF + 4 * (n & 3)
        va = V_GA[slot >> 3][ch] if gi < 28 else V_GA[2][ch] if slot >> 3 else V_GA[0][ch]
        return [Op(f"ds_read_b64_tr_b16 {v(d, 2)}, {v(va)} offset:{off}", lg=f"g{n}a"),
                Op(f"ds_read_b64_tr_b16 {v(d + 2, 2)}, {v(va)} offset:{off + 1024}", lg=f"g{n}")]

    def g3_mfma(self, n):
        gi, ch = n >> 1, n & 1
        d = (FACC if gi < 28 else SACC) + 16 * ch
        b = XF + 4 * (gi if gi < 28 else gi - 28)
        c = "0" if gi in (0, 28) else v(d, 16)
        return Op(f"v_mfma_f32_32x32x16_bf16 {v(d, 16)}, {v(WF + 4 * (n & 3), 4)}, {v(b, 4)}, {c}",
                  nlg=f"g{n}", nvm=f"h{gi}" if gi < 28 else f"o{gi - 28}")

    def area_addr(self, regs, t, off):
        if t < 2:
            return regs[1], self.AREA[t] - 0x20000 + off
        return regs[0], self.AREA[t] + off

    def exchange_write(self, a, base):
        done = self.lab("xw")
        labs = [self.lab("xq") for _ in range(4)]
        a("s_nop 7\ns_nop 3")
        for kq in range(4):
            if kq < 3:
                a(f"s_cmp_lg_u32 {s(S_KQ)}, {kq}\ns_cbranch_scc1 {labs[kq]}")
            for Q in range(4):
                if Q == kq:
                    continue
                for hf in range(2):
                    r, off = self.area_addr(V_EW, (kq - Q - 1) % 4, Q * 2048 + hf * 1024)
                    a(f"ds_write_b128 {v(r)}, {v(base + 8 * Q + 4 * hf, 4)} offset:{off}")
            for q in range(8):
                a(f"v_mov_b32 {v(V_SUM + q)}, {v(base + 8 * kq + q)}")
            if kq < 3:
                a(f"s_branch {done}\n{labs[kq]}:")
        a.label(done)

    def exchange_read(self):
        ops = []
        for t in range(3):
            for hf in range(2):
                r, off = self.area_addr(V_ER, t, hf * 1024)
                ops.append(Op(f"ds_read_b128 {v(V_RD + 8 * t + 4 * hf, 4)}, {v(r)} offset:{off}", lg=f"e{t}{hf}"))
        for t in range(3):
            for q in range(8):
                ops.append(Op(f"v_add_f32 {v(V_SUM + q)}, {v(V_SUM + q)}, {v(V_RD + 8 * t + q)}", nlg=f"e{t}{q >> 2}"))
        return ops

    def gemm3(self, a):
        c = self.cfg
        a(self.g3_addr())
        a(self.barrier(nvm=("B0", "B1", "B2", "B3"), nlg=()))
        for n in range(3):
            a(self.g3_read(n))
        issue = {0: [self.bdma(b) for b in range(14, 18)], 1: [self.bdma(b) for b in range(18, 20)],
                 2: [self.bdma(b) for b in range(20, 24)], 3: [self.bdma(b) for b in range(24, 28)],
                 4: [self.wodma(b) for b in range(4)], 5: [self.wodma(b) for b in range(4, 8)]}
        nb = [8 * st + 5 for st in range(7)]
        for G in range(8):
            rng = range(nb[G - 1] if G else 0, nb[G] if G < 7 else 56)
            side = {}
            if G == 1:
                side[rng[0]] = [self.signal([], S_OFLAG, V_SUM)]
            if G == c.pollo:
                side.setdefault(rng[0], []).append(self.poll_issue(V_SUM + 1, V_GP, "s" + str(S_T1), "po"))
            if G == c.pollo - 1:
                side.setdefault(rng[0], []).append(f"s_movk_i32 {s(S_T1)}, 4096")
            if G == 2:
                for q, o in enumerate(self.g3_addr2()):
                    side.setdefault(rng[1 + q // 2], []).append(o)
            if G == 6:
                side.setdefault(rng[1], []).append(
                    Op(f"buffer_load_dwordx4 {v(V_XRES, 4)}, {v(V_XO)}, {s(SRD_X, 4)}, {s(S_XOFF)} offen", vm="xr"))
            self.spread(side, rng, issue.get(G, []), 0 if G == 0 else 1)
            for n in rng:
                if n not in nb or n != rng[0]:
                    a(self.g3_mfma(n))
                if n + 3 < 56:
                    a(self.g3_read(n + 3))
                a(side.get(n, []))
            if G < 7:
                a(self.g3_mfma(nb[G]))
                if G < 6:
                    a(self.barrier(nvm=[f"B{b}" for b in range(4 * G + 4, 4 * G + 8)] + (["o"] if G == 0 else [])))
                else:
                    a(self.barrier())
        a(self.stamp(6))
        a(self.poll_check(V_SUM + 1, V_GP, "s" + str(S_T1), "po"))
        for g in range(8):
            if g == 4:
                a(f"s_add_u32 {s(S_OLD)}, {s(S_OLD)}, 4096")
            a(Op(f"buffer_load_dwordx4 {v(XF + 4 * g, 4)}, {v(V_L16)}, {s(SRD_WS, 4)}, {s(S_OLD)} offen offset:{1024 * (g % 4)} sc1", vm=f"o{g}"))
        self.exchange_write(a, FACC)
        a(f"""
        s_lshr_b32 {s(S_T0)}, {s(S_KQ)}, 1
        s_lshl_b32 {s(S_T0)}, {s(S_T0)}, 10
        v_subrev_u32 {v(V_GA[0][0])}, {s(S_T0)}, {v(V_GA[0][0])}
        v_subrev_u32 {v(V_GA[0][1])}, {s(S_T0)}, {v(V_GA[0][1])}
        v_subrev_u32 {v(V_GA[2][0])}, {s(S_T0)}, {v(V_GA[1][0])}
        v_subrev_u32 {v(V_GA[2][1])}, {s(S_T0)}, {v(V_GA[1][1])}
        """)
        a.drain(vm=False)
        a(self.barrier(nvm=[f"WO{b}" for b in range(8)]))
        for n in range(56, 59):
            a(self.g3_read(n))
        F = V_SUM + 8
        e = TMP + 16
        valu = self.exchange_read()
        valu += [Op(f"v_mul_f32 {v(e + q)}, 0xbfb8aa3b, {v(V_SUM + q)}") for q in range(8)]
        valu += [Op(f"v_exp_f32 {v(e + q)}, {v(e + q)}") for q in range(8)]
        valu += [Op(f"v_add_f32 {v(e + q)}, 1.0, {v(e + q)}") for q in range(8)]
        valu += [Op(f"v_rcp_f32 {v(e + q)}, {v(e + q)}") for q in range(8)]
        valu += [Op(f"v_mul_f32 {v(F + q)}, {v(V_SUM + q)}, {v(e + q)}") for q in range(8)]
        for q in range(4):
            valu += [Op(f"v_lshlrev_b32 {v(e + 2 * q)}, 16, {v(V_XRES + q)}", nvm="xr"),
                     Op(f"v_and_b32 {v(e + 2 * q + 1)}, 0xffff0000, {v(V_XRES + q)}")]
        a(valu[:30])
        main = [[self.g3_mfma(n)] + (self.g3_read(n + 3) if n + 3 < 72 else []) for n in range(56, 72)]
        a(interleave(main, valu[30:], 0, 14))
        a(self.barrier())
        self.exchange_write(a, SACC)
        a.drain(vm=False)
        a(self.barrier())
        a(self.exchange_read())
        for q in range(8):
            a(f"v_mul_f32 {v(V_SUM + q)}, {v(V_SUM + q)}, {v(F + q)}")
        for q in range(4):
            a(f"v_permlane32_swap_b32 {v(V_SUM + q)}, {v(V_SUM + 4 + q)}")
        for q in range(8):
            a(f"v_add_f32 {v(V_SUM + q)}, {v(V_SUM + q)}, {v(e + q)}")
        for q in range(4):
            a(f"v_cvt_pk_bf16_f32 {v(V_SUM + q)}, {v(V_SUM + 2 * q)}, {v(V_SUM + 2 * q + 1)}")
        a(Op(f"buffer_store_dwordx4 {v(V_SUM, 4)}, {v(V_XO)}, {s(SRD_OUT, 4)}, {s(S_XOFF)} offen", vm="out"))

    def finish(self, a):
        if self.cfg.prof:
            a(self.stamp(7))
            a("s_waitcnt lgkmcnt(0)")
            a(f"""
            s_lshl_b32 {s(S_T0)}, s2, 3
            s_add_u32 {s(S_T0)}, {s(S_T0)}, {s(S_W)}
            s_lshl_b32 {s(S_T0)}, {s(S_T0)}, 6
            s_add_u32 {s(S_T0)}, {s(S_T0)}, {PROF}
            s_mov_b64 exec, 1
            """)
            for k in range(8):
                a(f"v_mov_b32 {v(TMP)}, {s(S_PROF + 2 * k)}")
                a(f"buffer_store_dword {v(TMP)}, off, {s(SRD_WS, 4)}, {s(S_T0)} offset:{4 * k}")
                a("s_nop 1")

    def build(self):
        c = self.cfg
        a = Stream()
        self.prologue(a)
        self.gemm1_pass1(a)
        a(f"s_cmp_ge_u32 {s(S_J)}, 12\ns_cbranch_scc1 L_typec")
        t = a.fork()
        self.gemm1_pass2(a, False)
        t.label("L_typec")
        self.gemm1_pass2(t, True)
        join(a, t)
        t("s_nop 1\ns_branch L_join")
        a.label("L_join")
        self.attention_entry(a)
        self.attention(a)
        n = a.fork()
        if c.stop > 2:
            a(f"s_cmp_eq_u32 {s(S_GN)}, 7\ns_cbranch_scc1 L_noout")
            self.gemm3(a)
            a.label("L_fin")
        else:
            a("s_branch L_noout\nL_fin:")
        n.label("L_noout")
        n.drain()
        n(self.barrier())
        n(self.signal([], S_OFLAG, V_SUM))
        n("s_branch L_fin")
        self.finish(a)
        a.label("L_end")
        a("s_endpgm")
        body = a.text() + t.text() + n.text() + "\n".join(("    " + l if not l.endswith(":") else l) for l in self.tail) + "\n"
        print(f"nops {a.nops + t.nops}, waits {a.waits}, lines {len(a.out)} + {len(t.out)}", file=sys.stderr)
        return wrap([(NAME + "_kernel", body, 256, 102, 256)], [(NAME + "_kernel", 256, 512, 163840)])


if __name__ == "__main__":
    cfg = Cfg()
    for arg in sys.argv[2:]:
        k, _, val = arg.partition("=")
        setattr(cfg, k, type(getattr(cfg, k))(val))
    open(sys.argv[1], "w").write(Gen(cfg).build())
```

```python
import sys
import gen2
NAME = gen2.NAME
def make(path, args):
    cfg = gen2.Cfg()
    for arg in args:
        k, _, val = arg.partition("=")
        setattr(cfg, k, type(getattr(cfg, k))(val))
    body = gen2.Gen(cfg).build()
    ref = open(f"cdna_kernels/{NAME}.s.ref").read().split("\n")
    head = [l for l in ref[:ref.index(next(l for l in ref if l.startswith("; @launch")))]]
    open(path, "w").write("\n".join(head) + "\n" + body)
if __name__ == "__main__":
    make(sys.argv[1], sys.argv[2:])
```

```python
import sys
from emit import Stream, Op, interleave, join
from asmgen import NAME, wrap

FLAGS = 0x0
EPOCH = 0x8000
STAT = 0x10000
CS = 0x20000
POISON = 0x70000
QKV = 0x100000
HWS = 0x800000
OWS = 0x1000000
PROF = 0x1400000
WS_RECORDS = 0x2000000
QKV_TB, H_TB, O_TB = 192 * 512, 4 * 28 * 1024, 4 * 8 * 1024
NEG_BIG = 0xF149F2CA
C_EXP = 0x3E8B97F6

V_H2, V_LANE, V_L16, V_WQ, V_WF, V_WL, V_W2, V_XD, V_POLL = range(9)
V_XR = [9, 10, 11, 12]
V_WA = [13, 14, 15]
XF, ACC, WF, TMP = 16, 128, 208, 224
V_REC, V_MU = TMP + 24, TMP + 28
V_QLD, V_OSTV, V_VD, V_GP = V_WQ, V_WL, V_XD, V_WF
V_KE, V_KO, V_VE, V_VO = V_XR
V_Q = TMP + 28
S16, SP, OACC, V_PT = ACC, ACC + 4, ACC + 68, ACC + 76
FACC, SACC = ACC, ACC + 32
V_GA = [[TMP + 0, TMP + 1], [TMP + 2, TMP + 3], [TMP + 4, TMP + 5]]
V_EW, V_ER, V_XO = [TMP + 6, TMP + 7], [TMP + 8, TMP + 9], TMP + 10
V_XRES, V_SUM, V_RD = TMP + 12, ACC + 64, XF + 48

S_MA = 32
S_W, S_I, S_J, S_LDSW, S_NONCE = 3, 4, 5, 6, 7
S_LOFF = [8, 9, 10, 11, 12]
S_STEP12, S_X0, S_X1 = 13, 14, 15
S_PROF = 16
SRD_E = 32
SRD_X, SRD_WS, SRD_Q, SRD_L1, SRD_L2, SRD_W1, SRD_W3, SRD_W2, SRD_WO, SRD_OUT = range(36, 76, 4)
S_QST, S_QC = [76, 77, 78], [79, 80, 81]
S_HA, S_FLAG, S_MB = 82, 83, 84
S_CS, S_STAT = [86, 87], 88
S_BOFF, S_WOFF, S_AI, S_AH, S_GM = 89, 90, 91, 92, 93
S_T0, S_T1, S_T2, S_T3 = 94, 95, 96, 97
S_P98 = 98
S_SPIN, S_GN = 100, 101
S_KOFF, S_VOFF = [SRD_Q, SRD_Q + 1, SRD_Q + 2], [SRD_L1, SRD_L1 + 1, SRD_L1 + 2]
S_QOFF, S_OST, S_OFLAG = SRD_Q + 3, SRD_L1 + 3, SRD_L2
S_HLD, S_OLD, S_XOFF = SRD_L2 + 1, SRD_L2 + 2, SRD_L2 + 3
S_KQ = S_X0
S_EST, S_ESTEP = S_P98, S_P98 + 1


def v(i, n=1):
    return f"v{i}" if n == 1 else f"v[{i}:{i + n - 1}]"


def s(i, n=1):
    return f"s{i}" if n == 1 else f"s[{i}:{i + n - 1}]"


def acc(L):
    return ACC + 16 * L


def sblk(b):
    return S16 if b == 16 else SP + 4 * b


class Cfg:
    prof = 0
    dbgwg = 133
    stop = 99
    map1 = "4x8"
    n_pre = 10
    n_post = 0
    cap1 = 5
    cap2 = 3
    sigp = 0
    pollp = 4
    sig0 = 9
    poll0 = 13
    pollo = 5
    hbpos = 3


class Gen:
    def __init__(self, cfg):
        self.cfg = cfg
        self.nlab = 0
        self.tail = []

    def lab(self, base):
        self.nlab += 1
        return f"L_{base}_{self.nlab}"

    def stamp(self, k):
        if self.cfg.prof:
            return [f"s_memtime {s(S_PROF + 2 * k, 2)}"]
        return []

    def dma(self, slot, srd, voff, soff, tag, step=None, extra=""):
        ops = [Op(f"s_add_u32 m0, {s(S_LDSW)}, {slot * 8192}")]
        if step is not None:
            ops.append(Op(f"s_add_u32 {s(soff)}, {s(soff)}, {step}"))
        ops.append(Op(f"buffer_load_dwordx4 {v(voff)}, {s(srd, 4)}, {s(soff)} offen {extra} lds".replace("  ", " "), vm=tag))
        return ops

    W_UNITS = [(L, g) for g in range(7) for L in (0, 1, 2)] + [(L, g) for g in range(7) for L in (3, 4)]
    W_SLOT = list(range(8, 20)) + list(range(8, 20)) + [0, 1, 8, 9, 10, 2, 3, 11, 12, 13, 4]
    B_SLOT = [5, 6, 7, 0, 1, 8, 9, 10, 2, 3, 11, 12, 13, 4, 14, 15, 16, 17, 18, 19, 5, 6, 7, 0, 1, 8, 9, 10]
    WO_SLOT = [2, 3, 11, 12, 13, 4, 14, 15]
    AREA = [16 * 8192, 18 * 8192, 6 * 8192]

    def wdma(self, u):
        L, g = self.W_UNITS[u]
        srd = [SRD_Q, SRD_L1, SRD_L2, SRD_W1, SRD_W3][L]
        voff = [V_WQ, V_WL, V_WL, V_WF, V_WF][L]
        step = [64 * 2688, s(S_STEP12), s(S_STEP12), 64 * 3584, 64 * 3584][L]
        return self.dma(self.W_SLOT[u], srd, voff, S_LOFF[L], f"W{u}", step if g else None)

    def xdma(self, g, t):
        return self.dma(2 * (g & 3) + t, SRD_X, V_XD, S_X0 + t, f"X{g}{t}", 128 if g else None)

    def bdma(self, b):
        return self.dma(self.B_SLOT[b], SRD_W2, V_W2, S_BOFF, f"B{b}", 64 * 896 if b else None)

    def wodma(self, b):
        return self.dma(self.WO_SLOT[b], SRD_WO, V_W2, S_WOFF, f"WO{b}", 56 * 896 if b else None)

    def g1_dma_plan(self):
        c = self.cfg
        q = []
        for g in range(7):
            q += [(max(g - 3, 0), g - 1, self.xdma(g, t)) for t in range(2)]
            q += [(max(g - 2, 0) if g > 3 else 0, g - 1, self.wdma(u)) for u in range(3 * g, 3 * g + 3)]
        first = {21: 5, 22: 5, 23: 5, 24: 5, 25: 5, 26: 6, 27: 6, 28: 6, 29: 6, 30: 6, 31: 7, 32: 7, 33: 7, 34: 7}
        for u in range(21, 35):
            q.append((first[u], 6 + (u - 21) // 2, self.wdma(u)))
        for b, e in enumerate((7, 8, 8, 10, 11, 11, 12, 12, 13, 13)):
            q.append((e, 99, self.bdma(b)))
        n0 = c.n_pre + c.n_post
        init = [x[2] for x in q[:n0]]
        q = q[n0:]
        plan = {}
        for G in range(14):
            cap = c.cap1 if G < 7 else c.cap2
            if G == c.pollp + 1:
                cap -= 2
            pick = [x for x in q if x[0] <= G][:cap]
            for x in pick:
                assert G <= x[1], ("late DMA", G, x[2][-1].vm)
                q.remove(x)
            plan[G] = [x[2] for x in pick]
        assert all(x[1] == 99 for x in q)
        plan["rest"] = [x[2] for x in q]
        return init, plan

    def signal(self, soff_ops, soff, vt):
        l = self.lab("sig")
        return [[f"s_cmp_lg_u32 {s(S_W)}, 0", f"s_cbranch_scc1 {l}",
                 f"v_mov_b32 {v(vt)}, {s(S_NONCE)}", "s_mov_b64 exec, 1"] + soff_ops +
                [f"buffer_store_dword {v(vt)}, off, {s(SRD_WS, 4)}, {s(soff)} sc1",
                 "s_mov_b64 exec, -1", f"{l}:"]]

    def signal_g1(self, stage, vt):
        return self.signal([f"s_add_u32 {s(S_T3)}, {s(S_FLAG)}, {stage * 4096}"], S_T3, vt)

    def signal_pre(self):
        l = self.lab("sigp")
        return [[f"s_cmp_lg_u32 {s(S_W)}, 0", f"s_cbranch_scc1 {l}",
                 f"s_lshl_b32 {s(S_T2)}, {s(S_J)}, 8", f"s_lshl_b32 {s(S_T3)}, {s(S_I)}, 2",
                 f"s_add_u32 {s(S_T2)}, {s(S_T2)}, {s(S_T3)}", f"s_add_u32 {s(S_T2)}, {s(S_T2)}, {5 * 4096}",
                 f"s_add_u32 {s(S_T3)}, {s(S_FLAG)}, {4 * 4096}",
                 f"v_mov_b32 {v(TMP)}, {s(S_NONCE)}", f"v_mov_b32 {v(TMP + 1)}, {s(S_T2)}",
                 f"v_writelane_b32 {v(TMP + 1)}, {s(S_T3)}, 0",
                 "s_mov_b64 exec, 3",
                 f"buffer_store_dword {v(TMP)}, {v(TMP + 1)}, {s(SRD_WS, 4)}, 0 offen sc1",
                 "s_mov_b64 exec, -1", f"{l}:"]]

    def poll_text(self, vdst, vaddr, off):
        return f"buffer_load_dword {v(vdst)}, {v(vaddr)}, {s(SRD_WS, 4)}, {off} offen sc1"

    def poll_issue(self, vdst, vaddr, off, tag):
        return Op(self.poll_text(vdst, vaddr, off), vm=tag)

    def poll_check(self, vdst, vaddr, off, tag):
        spin, back = self.lab("spin"), self.lab("back")
        self.tail += [f"{spin}:", f"s_mov_b32 {s(S_SPIN)}, 0", f"{spin}_l:",
                      self.poll_text(vdst, vaddr, off),
                      f"s_add_u32 {s(S_SPIN)}, {s(S_SPIN)}, 1",
                      f"s_cmp_gt_u32 {s(S_SPIN)}, 0x4000", f"s_cbranch_scc1 {spin}_x",
                      "s_waitcnt vmcnt(0)",
                      f"v_cmp_ne_u32 vcc, {s(S_NONCE)}, {v(vdst)}", "s_nop 1",
                      "s_cmp_lg_u64 vcc, 0", f"s_cbranch_scc1 {spin}_l",
                      f"{spin}_x:", "s_waitcnt vmcnt(0)", f"s_branch {back}"]
        return [[Op(f"v_cmp_ne_u32 vcc, {s(S_NONCE)}, {v(vdst)}", nvm=tag),
                 "s_cmp_lg_u64 vcc, 0", f"s_cbranch_scc1 {spin}", f"{back}:"]]

    def barrier(self, nvm=(), nlg=()):
        return Op("s_barrier", nvm=nvm, nlg=nlg)

    def prologue(self, a):
        c = self.cfg
        a("s_cmp_ge_u32 s2, 256\ns_cbranch_scc1 L_end")
        if c.prof:
            a(f"s_memtime {s(S_PROF, 2)}")
        if c.prof == 2:
            a(f"s_memrealtime {s(S_PROF + 14, 2)}")
        for srd, off in ((SRD_X, 0), (SRD_Q, 8), (SRD_W1, 32), (SRD_W3, 40), (SRD_WS, 72), (SRD_W2, 48), (SRD_WO, 16), (SRD_OUT, 56)):
            a(f"s_load_dwordx2 {s(srd, 2)}, s[0:1], {off}")
        a(f"""
        v_lshrrev_b32 {v(TMP)}, 6, v0
        v_and_b32 {v(V_LANE)}, 63, v0
        v_readfirstlane_b32 {s(S_W)}, {v(TMP)}
        """)
        if c.map1 == "4x8":
            a(f"""
            s_and_b32 {s(S_I)}, s2, 3
            s_lshl_b32 {s(S_I)}, {s(S_I)}, 2
            s_bfe_u32 {s(S_T0)}, s2, 0x20003
            s_add_u32 {s(S_I)}, {s(S_I)}, {s(S_T0)}
            s_bfe_u32 {s(S_J)}, s2, 0x10002
            s_lshl_b32 {s(S_J)}, {s(S_J)}, 3
            s_lshr_b32 {s(S_T0)}, s2, 5
            s_add_u32 {s(S_J)}, {s(S_J)}, {s(S_T0)}
            """)
        elif c.map1 == "8x4":
            a(f"""
            s_and_b32 {s(S_I)}, s2, 1
            s_lshl_b32 {s(S_I)}, {s(S_I)}, 3
            s_bfe_u32 {s(S_T0)}, s2, 0x30003
            s_add_u32 {s(S_I)}, {s(S_I)}, {s(S_T0)}
            s_bfe_u32 {s(S_J)}, s2, 0x20001
            s_lshl_b32 {s(S_J)}, {s(S_J)}, 2
            s_lshr_b32 {s(S_T0)}, s2, 6
            s_add_u32 {s(S_J)}, {s(S_J)}, {s(S_T0)}
            """)
        else:
            a(f"""
            s_and_b32 {s(S_I)}, s2, 7
            s_lshl_b32 {s(S_I)}, {s(S_I)}, 1
            s_bfe_u32 {s(S_T0)}, s2, 0x10003
            s_add_u32 {s(S_I)}, {s(S_I)}, {s(S_T0)}
            s_lshr_b32 {s(S_J)}, s2, 4
            """)
        r8, c8, t2, t3, t4, ve = TMP, TMP + 1, TMP + 2, TMP + 3, TMP + 4, TMP + 5
        for srd, nrec in ((SRD_X, 2048 * 896), (SRD_Q, 448 * 2688), (SRD_W1, 448 * 3584), (SRD_W3, 448 * 3584)):
            a(f"s_mov_b32 {s(srd + 2)}, {nrec}\ns_mov_b32 {s(srd + 3)}, 0x20000")
        a(f"""
        s_lshl_b32 {s(S_LDSW)}, {s(S_W)}, 10
        s_mul_i32 {s(S_X0)}, {s(S_I)}, {128 * 896}
        s_add_u32 {s(S_X1)}, {s(S_X0)}, {64 * 896}
        s_mul_i32 {s(S_T0)}, {s(S_J)}, 3
        s_sub_u32 {s(S_T0)}, {s(S_T0)}, 24
        s_lshl_b32 {s(S_T2)}, {s(S_J)}, 7
        s_cmp_ge_u32 {s(S_J)}, 12
        s_cselect_b32 {s(S_QC[0])}, {s(S_T0)}, {s(S_J)}
        s_mul_i32 {s(S_LOFF[0])}, {s(S_QC[0])}, 112
        s_cselect_b32 {s(S_LOFF[1])}, {s(S_LOFF[0])}, {s(S_T2)}
        s_cselect_b32 {s(S_T1)}, 112, 0
        s_cselect_b32 {s(SRD_L1 + 2)}, {s(SRD_Q + 2)}, {s(SRD_W1 + 2)}
        s_cselect_b32 {s(SRD_L2 + 2)}, {s(SRD_Q + 2)}, {s(SRD_W1 + 2)}
        s_mov_b32 {s(S_STEP12)}, {64 * 3584}
        s_cselect_b32 {s(S_STEP12)}, {64 * 2688}, {s(S_STEP12)}
        s_cselect_b64 vcc, -1, 0
        s_add_u32 {s(S_LOFF[1])}, {s(S_LOFF[1])}, {s(S_T1)}
        s_add_u32 {s(S_LOFF[2])}, {s(S_LOFF[1])}, {s(S_T1)}
        s_add_u32 {s(S_LOFF[3])}, {s(S_T2)}, {12 * 128}
        s_mov_b32 {s(S_LOFF[4])}, {s(S_LOFF[3])}
        s_mov_b32 {s(SRD_L1 + 3)}, 0x20000
        s_mov_b32 {s(SRD_L2 + 3)}, 0x20000
        s_mov_b32 {s(SRD_E + 3)}, 0x20000
        """)
        a(f"""
        v_lshrrev_b32 {v(r8)}, 3, {v(V_LANE)}
        v_and_b32 {v(c8)}, 7, {v(V_LANE)}
        s_lshl_b32 {s(S_T0)}, {s(S_W)}, 3
        v_lshlrev_b32 {v(t2)}, 1, {v(r8)}
        v_and_b32 {v(t2)}, 4, {v(t2)}
        v_xor_b32 {v(t2)}, {v(t2)}, {v(c8)}
        v_add_u32 {v(t3)}, {s(S_T0)}, {v(r8)}
        v_lshrrev_b32 {v(t4)}, 2, {v(t2)}
        v_sub_u32 {v(t4)}, {v(t2)}, {v(t4)}
        v_mul_u32_u24 {v(V_WQ)}, 2688, {v(t3)}
        v_mul_u32_u24 {v(V_WF)}, 3584, {v(t3)}
        v_mul_u32_u24 {v(V_W2)}, 896, {v(t3)}
        v_lshl_add_u32 {v(V_WQ)}, {v(t4)}, 4, {v(V_WQ)}
        v_lshl_add_u32 {v(V_WF)}, {v(t2)}, 4, {v(V_WF)}
        v_bfe_u32 {v(t4)}, {v(t3)}, 1, 3
        v_xor_b32 {v(t4)}, {v(t4)}, {v(c8)}
        v_lshl_add_u32 {v(V_XD)}, {v(t4)}, 4, {v(V_W2)}
        v_lshl_add_u32 {v(V_W2)}, {v(t2)}, 4, {v(V_W2)}
        v_cndmask_b32 {v(V_WL)}, {v(V_WF)}, {v(V_WQ)}, vcc
        """)
        a(f"""
        s_cmp_ge_u32 {s(S_J)}, 12
        s_cselect_b32 {s(S_T0)}, 3, 1
        s_cmp_lt_u32 {s(S_W)}, {s(S_T0)}
        s_cselect_b32 {s(S_T3)}, 1, 0
        s_cselect_b32 {s(SRD_E + 2)}, {s(SRD_Q + 2)}, {s(SRD_W1 + 2)}
        s_movk_i32 {s(S_T1)}, 3584
        s_cselect_b32 {s(S_T1)}, 2688, {s(S_T1)}
        s_cmp_eq_u32 {s(S_W)}, 1
        s_cselect_b32 {s(S_T2)}, {s(S_LOFF[1])}, {s(S_LOFF[0])}
        s_cmp_eq_u32 {s(S_W)}, 2
        s_cselect_b32 {s(S_T2)}, {s(S_LOFF[2])}, {s(S_T2)}
        s_cmp_ge_u32 {s(S_W)}, 3
        s_cselect_b32 {s(S_T2)}, {s(S_LOFF[3])}, {s(S_T2)}
        s_mul_i32 {s(S_ESTEP)}, {s(S_T1)}, 7
        s_mul_i32 {s(S_EST)}, {s(S_ESTEP)}, {s(S_I)}
        s_lshl_b32 {s(S_EST)}, {s(S_EST)}, 2
        s_add_u32 {s(S_EST)}, {s(S_EST)}, {s(S_T2)}
        s_lshl_b32 {s(S_T0)}, {s(S_I)}, 4
        s_add_u32 {s(S_T0)}, {s(S_T0)}, {s(S_J)}
        s_mul_i32 {s(S_T2)}, {s(S_T0)}, {8 * 896}
        s_cmp_eq_u32 {s(S_W)}, 5
        s_cselect_b32 {s(S_EST)}, {s(S_T2)}, {s(S_EST)}
        s_cselect_b32 {s(S_T1)}, 896, {s(S_T1)}
        s_cselect_b32 {s(S_T2)}, 8, 7
        v_lshrrev_b32 {v(t2)}, 2, {v(c8)}
        v_and_b32 {v(t2)}, {s(S_T3)}, {v(t2)}
        v_sub_u32 {v(t2)}, {v(c8)}, {v(t2)}
        v_mul_u32_u24 {v(ve)}, {s(S_T1)}, {v(r8)}
        v_lshl_add_u32 {v(ve)}, {v(t2)}, 4, {v(ve)}
        v_cmp_gt_u32 vcc, {s(S_T2)}, {v(r8)}
        v_mov_b32 {v(t2)}, 0x7ff00000
        v_cndmask_b32 {v(ve)}, {v(t2)}, {v(ve)}, vcc
        s_waitcnt lgkmcnt(0)
        s_load_dword {s(S_NONCE)}, {s(SRD_WS, 2)}, {EPOCH}
        """)
        for srd in (SRD_X, SRD_Q, SRD_W1, SRD_W3):
            a(f"s_and_b32 {s(srd + 1)}, {s(srd + 1)}, 0xffff")
        a(f"""
        s_bitcmp1_b32 {s(S_W)}, 0
        s_cselect_b64 {s(SRD_E, 2)}, {s(SRD_W1, 2)}, {s(SRD_W3, 2)}
        s_cmp_eq_u32 {s(S_T3)}, 1
        s_cselect_b64 {s(SRD_E, 2)}, {s(SRD_Q, 2)}, {s(SRD_E, 2)}
        s_cmp_gt_u32 {s(S_W)}, 5
        s_cbranch_scc1 L_eld_done
        s_cmp_eq_u32 {s(S_W)}, 5
        s_cbranch_scc1 L_eld_row
        """)
        for q in range(4):
            if q:
                a(f"s_add_u32 {s(S_EST)}, {s(S_EST)}, {s(S_ESTEP)}")
            a(f"buffer_load_dwordx4 {v(ACC + 4 * q, 4)}, {v(ve)}, {s(SRD_E, 4)}, {s(S_EST)} offen")
        a("s_branch L_eld_done\nL_eld_row:")
        for q in range(7):
            a(f"buffer_load_dwordx4 {v(ACC + 4 * q, 4)}, {v(ve)}, {s(SRD_X, 4)}, {s(S_EST)} offen offset:{128 * q}")
        a(f"""
        L_eld_done:
        s_cmp_ge_u32 {s(S_J)}, 12
        s_cselect_b64 {s(SRD_L1, 2)}, {s(SRD_Q, 2)}, {s(SRD_W1, 2)}
        s_cselect_b64 {s(SRD_L2, 2)}, {s(SRD_Q, 2)}, {s(SRD_W3, 2)}
        """)
        init, self.plan = self.g1_dma_plan()
        for d in init[:c.n_pre]:
            a(d)
        self.setup_rest(a, r8, c8)
        self.prework(a, r8, c8)
        for d in init[c.n_pre:]:
            a(d)

    def setup_rest(self, a, r8, c8):
        for srd, nrec in ((SRD_WS, WS_RECORDS), (SRD_W2, 1792 * 896), (SRD_WO, 448 * 896), (SRD_OUT, 2048 * 896)):
            a(f"s_and_b32 {s(srd + 1)}, {s(srd + 1)}, 0xffff\ns_mov_b32 {s(srd + 2)}, {nrec}\ns_mov_b32 {s(srd + 3)}, 0x20000")
        cw, rb = S_T0, S_T1
        a(f"""
        s_lshr_b32 {s(cw)}, {s(S_W)}, 2
        s_and_b32 {s(rb)}, {s(S_W)}, 3
        s_cmp_eq_u32 {s(cw)}, 0
        s_mov_b32 {s(S_MA)}, 0
        s_cselect_b32 {s(S_MA + 1)}, -1, 0
        s_cselect_b32 {s(S_MB)}, 0, -1
        s_mov_b32 {s(S_MB + 1)}, 0
        s_lshl_b32 {s(S_T2)}, {s(S_I)}, 2
        s_add_u32 {s(S_T2)}, {s(S_T2)}, {s(rb)}
        s_lshl_b32 {s(S_STAT)}, {s(S_T2)}, 9
        s_add_u32 {s(S_STAT)}, {s(S_STAT)}, {STAT}
        s_mul_i32 {s(S_HA)}, {s(S_T2)}, {H_TB}
        s_mul_i32 {s(S_QST[0])}, {s(S_T2)}, {QKV_TB}
        s_mul_i32 {s(S_T2)}, {s(cw)}, {2 * 28672}
        s_add_u32 {s(S_HA)}, {s(S_HA)}, {s(S_T2)}
        s_lshl_b32 {s(S_T2)}, {s(S_J)}, 10
        s_add_u32 {s(S_HA)}, {s(S_HA)}, {s(S_T2)}
        s_add_u32 {s(S_HA)}, {s(S_HA)}, {HWS}
        s_lshl_b32 {s(S_T2)}, {s(cw)}, 11
        s_add_u32 {s(S_QST[0])}, {s(S_QST[0])}, {s(S_T2)}
        s_lshl_b32 {s(S_T2)}, {s(S_QC[0])}, 12
        s_add_u32 {s(S_QST[0])}, {s(S_QST[0])}, {s(S_T2)}
        s_add_u32 {s(S_QST[0])}, {s(S_QST[0])}, {QKV}
        s_add_u32 {s(S_QST[1])}, {s(S_QST[0])}, 4096
        s_add_u32 {s(S_QST[2])}, {s(S_QST[0])}, 8192
        s_add_u32 {s(S_QC[1])}, {s(S_QC[0])}, 1
        s_add_u32 {s(S_QC[2])}, {s(S_QC[0])}, 2
        """)
        for k in range(3):
            a(f"s_bitcmp1_b32 {s(S_QC[k])}, 3\ns_cselect_b32 {s(S_QC[k])}, 0, 0x3f80")
        a(f"""
        s_lshl_b32 {s(S_FLAG)}, {s(S_I)}, 8
        s_lshl_b32 {s(S_T2)}, {s(S_J)}, 2
        s_add_u32 {s(S_FLAG)}, {s(S_FLAG)}, {s(S_T2)}
        s_lshl_b32 {s(S_CS[0])}, {s(S_J)}, 14
        s_add_u32 {s(S_CS[0])}, {s(S_CS[0])}, {s(S_LDSW)}
        s_add_u32 {s(S_CS[0])}, {s(S_CS[0])}, {CS}
        s_add_u32 {s(S_CS[1])}, {s(S_CS[0])}, 8192
        s_cmp_lt_u32 {s(S_W)}, 2
        s_cselect_b32 {s(S_CS[1])}, {s(S_CS[1])}, {WS_RECORDS}
        s_and_b32 {s(S_T2)}, s2, 7
        s_lshr_b32 {s(S_T3)}, s2, 3
        s_lshl_b32 {s(S_AH)}, {s(S_T2)}, 1
        s_lshl_b32 {s(S_GM)}, {s(S_T2)}, 2
        s_and_b32 {s(S_T2)}, {s(S_T3)}, 1
        s_add_u32 {s(S_AH)}, {s(S_AH)}, {s(S_T2)}
        s_lshr_b32 {s(S_AI)}, {s(S_T3)}, 1
        s_and_b32 {s(S_T2)}, {s(S_T3)}, 3
        s_add_u32 {s(S_GM)}, {s(S_GM)}, {s(S_T2)}
        s_lshr_b32 {s(S_GN)}, {s(S_T3)}, 2
        s_lshl_b32 {s(S_BOFF)}, {s(S_GN)}, 7
        s_mov_b32 {s(S_WOFF)}, {s(S_BOFF)}
        s_cmp_eq_u32 {s(S_GN)}, 7
        s_cselect_b32 {s(SRD_W2 + 2)}, 0, {s(SRD_W2 + 2)}
        """)
        l31, hh, t2, t3 = TMP + 2, TMP + 3, TMP + 4, TMP + 6
        a(f"""
        v_and_b32 {v(l31)}, 31, {v(V_LANE)}
        v_lshrrev_b32 {v(hh)}, 5, {v(V_LANE)}
        v_bfe_u32 {v(t2)}, {v(V_LANE)}, 1, 3
        v_xor_b32 {v(t2)}, {v(t2)}, {v(hh)}
        v_lshlrev_b32 {v(t2)}, 4, {v(t2)}
        v_lshl_add_u32 {v(t2)}, {v(l31)}, 7, {v(t2)}
        s_lshl_b32 {s(S_T2)}, {s(rb)}, 12
        v_add_u32 {v(V_XR[0])}, {s(S_T2)}, {v(t2)}
        v_xor_b32 {v(V_XR[1])}, 32, {v(V_XR[0])}
        v_xor_b32 {v(V_XR[2])}, 64, {v(V_XR[0])}
        v_xor_b32 {v(V_XR[3])}, 0x60, {v(V_XR[0])}
        v_bfe_u32 {v(t2)}, {v(V_LANE)}, 2, 2
        v_lshl_add_u32 {v(t3)}, {v(hh)}, 3, {v(t2)}
        v_lshlrev_b32 {v(t3)}, 7, {v(t3)}
        v_lshrrev_b32 {v(t2)}, 1, {v(t2)}
        v_xor_b32 {v(t2)}, {s(cw)}, {v(t2)}
        v_lshl_add_u32 {v(t3)}, {v(t2)}, 6, {v(t3)}
        v_bfe_u32 {v(hh)}, {v(V_LANE)}, 4, 1
        v_lshl_add_u32 {v(t3)}, {v(hh)}, 5, {v(t3)}
        v_and_b32 {v(t2)}, 3, {v(V_LANE)}
        v_lshl_add_u32 {v(V_WA[0])}, {v(t2)}, 3, {v(t3)}
        v_add_u32 {v(V_WA[1])}, 0x10000, {v(V_WA[0])}
        v_add_u32 {v(V_WA[2])}, 0x20000, {v(V_WA[0])}
        v_lshlrev_b32 {v(V_L16)}, 4, {v(V_LANE)}
        v_add_u32 {v(V_H2)}, 28672, {v(V_L16)}
        s_lshl_b32 {s(S_T2)}, {s(S_I)}, 8
        s_lshl_b32 {s(S_T3)}, {s(S_J)}, 8
        s_add_u32 {s(S_T2)}, {s(S_T2)}, {4 * 4096}
        s_add_u32 {s(S_T3)}, {s(S_T3)}, {5 * 4096}
        s_sub_u32 {s(S_T3)}, {s(S_T3)}, {s(S_T2)}
        v_and_b32 {v(t2)}, 15, {v(V_LANE)}
        v_mul_lo_u32 {v(hh)}, {v(hh)}, {s(S_T3)}
        v_lshl_add_u32 {v(V_POLL)}, {v(t2)}, 2, {v(hh)}
        v_add_u32 {v(V_POLL)}, {s(S_T2)}, {v(V_POLL)}
        """)

    def prework(self, a, r8, c8):
        n = self.cfg.n_pre
        A = [TMP + 8 + e for e in range(8)]
        val, adr = TMP + 16, TMP + 17
        a(f"""
        s_mov_b32 {s(S_EST)}, {WS_RECORDS}
        s_cmp_gt_u32 {s(S_W)}, 5
        s_cbranch_scc1 L_e_none
        s_cmp_eq_u32 {s(S_W)}, 5
        s_cbranch_scc1 L_e_row
        s_movk_i32 {s(S_T0)}, 0x3f80
        s_mov_b32 {s(S_T1)}, 0x3f800000
        s_lshl_b32 {s(S_EST)}, {s(S_J)}, 14
        s_lshl_b32 {s(S_T2)}, {s(S_W)}, 11
        s_add_u32 {s(S_EST)}, {s(S_EST)}, {s(S_T2)}
        s_lshl_b32 {s(S_T2)}, {s(S_I)}, 7
        s_add_u32 {s(S_EST)}, {s(S_EST)}, {s(S_T2)}
        s_add_u32 {s(S_EST)}, {s(S_EST)}, {CS}
        s_bfe_u32 {s(S_T2)}, {s(S_I)}, 0x10001
        s_lshl_b32 {s(S_T2)}, {s(S_T2)}, 6
        v_lshrrev_b32 {v(val)}, 4, {v(V_LANE)}
        v_lshlrev_b32 {v(val)}, 2, {v(val)}
        v_lshl_add_u32 {v(adr)}, {v(c8)}, 4, {v(val)}
        v_xor_b32 {v(adr)}, {s(S_T2)}, {v(adr)}
        """)
        for e in range(8):
            a(f"v_mov_b32 {v(A[e])}, 0")
        for q in range(4):
            a(f"s_waitcnt vmcnt({n + 3 - q})")
            for k in range(4):
                a(f"v_dot2c_f32_bf16 {v(A[2 * k])}, {s(S_T0)}, {v(ACC + 4 * q + k)}")
                a(f"v_dot2c_f32_bf16 {v(A[2 * k + 1])}, {s(S_T1)}, {v(ACC + 4 * q + k)}")
        for e in range(4):
            a(f"v_permlane32_swap_b32 {v(A[e])}, {v(A[e + 4])}")
        for e in range(4):
            a(f"v_add_f32 {v(A[e])}, {v(A[e])}, {v(A[e + 4])}")
        for e in range(2):
            a(f"v_permlane16_swap_b32 {v(A[e])}, {v(A[e + 2])}")
        for e in range(2):
            a(f"v_add_f32 {v(A[e])}, {v(A[e])}, {v(A[e + 2])}")
        for e in range(2):
            a(f"v_add_f32_dpp {v(A[e])}, {v(A[e])}, {v(A[e])} row_ror:8 row_mask:0xf bank_mask:0xf")
        a(f"""
        v_cvt_pk_bf16_f32 {v(val)}, {v(A[0])}, {v(A[1])}
        s_branch L_e_done
        L_e_row:
        s_mov_b32 {s(S_T0)}, 0x3f803f80
        s_lshl_b32 {s(S_EST)}, {s(S_I)}, 4
        s_add_u32 {s(S_EST)}, {s(S_EST)}, {s(S_J)}
        s_lshl_b32 {s(S_EST)}, {s(S_EST)}, 7
        s_add_u32 {s(S_EST)}, {s(S_EST)}, {STAT}
        v_and_b32 {v(val)}, 3, {v(c8)}
        v_lshlrev_b32 {v(adr)}, 4, {v(r8)}
        v_lshl_add_u32 {v(adr)}, {v(val)}, 2, {v(adr)}
        """)
        for e in range(4):
            a(f"v_mov_b32 {v(A[e])}, 0")
        for q in range(7):
            a(f"s_waitcnt vmcnt({n + 6 - q})")
            for k in range(4):
                x = ACC + 4 * q + k
                a(f"v_dot2c_f32_bf16 {v(A[2 * (k & 1)])}, {s(S_T0)}, {v(x)}")
                a(f"v_dot2c_f32_bf16 {v(A[2 * (k & 1) + 1])}, {v(x)}, {v(x)}")
        a(f"v_add_f32 {v(A[0])}, {v(A[0])}, {v(A[2])}\nv_add_f32 {v(A[1])}, {v(A[1])}, {v(A[3])}")
        for pat in ("quad_perm:[1,0,3,2]", "quad_perm:[2,3,0,1]", "row_half_mirror"):
            for e in range(2):
                a(f"v_add_f32_dpp {v(A[e])}, {v(A[e])}, {v(A[e])} {pat} row_mask:0xf bank_mask:0xf")
        inv = 0x3B124925
        a(f"""
        v_mul_f32 {v(A[0])}, {inv}, {v(A[0])}
        v_mul_f32 {v(A[1])}, {inv}, {v(A[1])}
        v_fma_f32 {v(A[1])}, -{v(A[0])}, {v(A[0])}, {v(A[1])}
        v_max_f32 {v(A[1])}, 0, {v(A[1])}
        v_add_f32 {v(A[1])}, 0x3727c5ac, {v(A[1])}
        v_rsq_f32 {v(A[2])}, {v(A[1])}
        v_cvt_pk_bf16_f32 {v(A[0])}, -{v(A[0])}, -{v(A[0])}
        v_cmp_eq_u32 vcc, 2, {v(val)}
        v_mul_f32 {v(A[3])}, 0xbfb8aa3b, {v(A[2])}
        v_cndmask_b32 {v(A[1])}, {v(A[1])}, {v(A[3])}, vcc
        v_cmp_eq_u32 vcc, 1, {v(val)}
        v_cndmask_b32 {v(A[1])}, {v(A[1])}, {v(A[2])}, vcc
        v_cmp_eq_u32 vcc, 0, {v(val)}
        v_cndmask_b32 {v(val)}, {v(A[1])}, {v(A[0])}, vcc
        s_branch L_e_done
        L_e_none:
        v_mov_b32 {v(adr)}, 0
        s_or_b32 {s(S_T0)}, {s(S_I)}, {s(S_J)}
        s_cmp_lg_u32 {s(S_T0)}, 0
        s_cbranch_scc1 L_e_done
        s_and_b32 {s(S_T0)}, {s(S_W)}, 1
        s_lshl_b32 {s(S_T1)}, {s(S_T0)}, 11
        s_add_u32 {s(S_T1)}, {s(S_T1)}, {POISON}
        s_cmp_eq_u32 {s(S_T0)}, 0
        s_cselect_b32 {s(S_T2)}, 0, 0xf149
        s_cselect_b32 {s(S_T3)}, 0xf149, 0
        v_cmp_gt_u32 vcc, 32, {v(V_LANE)}
        v_mov_b32 {v(A[0])}, {s(S_T2)}
        v_mov_b32 {v(A[6])}, {s(S_T3)}
        v_cndmask_b32 {v(A[0])}, 0, {v(A[0])}, vcc
        v_cndmask_b32 {v(A[6])}, {v(A[6])}, 0, vcc
        """)
        for e in (1, 2, 3, 4, 5, 7):
            a(f"v_mov_b32 {v(A[e])}, 0")
        a(f"""
        buffer_store_dwordx4 {v(A[0], 4)}, {v(V_L16)}, {s(SRD_WS, 4)}, {s(S_T1)} offen sc1
        buffer_store_dwordx4 {v(A[4], 4)}, {v(V_L16)}, {s(SRD_WS, 4)}, {s(S_T1)} offen offset:1024 sc1
        L_e_done:
        s_nop 1
        """)
        a(Op(f"buffer_store_dword {v(val)}, {v(adr)}, {s(SRD_WS, 4)}, {s(S_EST)} offen sc1", vm="E"))

    SEQ = ([(3 * g + L, k) for g in range(7) for k in range(4) for L in range(3)] + [(None, L) for L in range(5)] +
           [(21 + 2 * g + L, k) for g in range(7) for k in range(4) for L in range(2)])
    NB = [12 * g + 9 for g in range(7)] + [89 + 8 * g + 5 for g in range(7)]

    def g1_wread(self, n):
        u, k = self.SEQ[n]
        slot = 6 if u is None else self.W_SLOT[u]
        off = (slot & 7) * 8192 + k * 2048
        d = WF + 4 * (n & 3)
        return [Op(f"ds_read_b64_tr_b16 {v(d, 2)}, {v(V_WA[slot >> 3])} offset:{off}", lg=f"w{n}a"),
                Op(f"ds_read_b64_tr_b16 {v(d + 2, 2)}, {v(V_WA[slot >> 3])} offset:{off + 512}", lg=f"w{n}")]

    def g1_mfma(self, n):
        u, k = self.SEQ[n]
        if u is None:
            L, b, c, tags = k, V_MU, ("0" if k >= 3 else v(acc(k), 16)), (f"w{n}",)
        else:
            L, g = self.W_UNITS[u]
            b, c, tags = XF + 16 * g + 4 * k, ("0" if (u < 3 and k == 0) else v(acc(L), 16)), (f"w{n}", f"xf{g}{k}")
        return Op(f"v_mfma_f32_32x32x16_bf16 {v(acc(L), 16)}, {v(WF + 4 * (n & 3), 4)}, {v(b, 4)}, {c}", nlg=tags)

    def xf_read(self, g, k):
        return Op(f"ds_read_b128 {v(XF + 16 * g + 4 * k, 4)}, {v(V_XR[k])} offset:{(g & 3) * 16384}", lg=f"xf{g}{k}")

    def g1_barrier(self, G, extra=()):
        if G < 6:
            need = [f"X{G + 1}0", f"X{G + 1}1"] + [f"W{u}" for u in range(3 * G + 3, 3 * G + 6)]
        elif G == 6:
            need = ["A0", "A1", "W21", "W22"]
        else:
            need = [f"W{u}" for u in (9 + 2 * G, 10 + 2 * G) if u < 35]
        return self.barrier(nvm=need + list(extra))

    def g1_range(self, G):
        return range(self.NB[G - 1] if G else 0, self.NB[G])

    def g1_emit(self, a, rng, side, valu, bars):
        k = 0
        for idx, n in enumerate(rng):
            if n not in bars or n != rng[0] or n == 0:
                a(self.g1_mfma(n))
            if n + 3 < len(self.SEQ):
                a(self.g1_wread(n + 3))
            a(side.get(n, []))
            tgt = (len(valu) * (idx + 1) + len(rng) - 1) // len(rng)
            while k < tgt:
                a(valu[k]); k += 1

    @staticmethod
    def spread(side, rng, items, first=1):
        if not items:
            return
        span = len(rng) - first
        for q, it in enumerate(items):
            side.setdefault(rng[first + (q * span) // len(items)], []).append(it)

    def gemm1_pass1(self, a):
        c = self.cfg
        a(f"""
        s_waitcnt lgkmcnt(0)
        s_mul_i32 {s(S_NONCE)}, {s(S_NONCE)}, 0x41c64e6d
        s_add_u32 {s(S_NONCE)}, {s(S_NONCE)}, 0x3039
        """)
        a(self.barrier(nvm=("X00", "X01", "W0", "W1", "W2")))
        a(self.stamp(1))
        a(self.xf_read(0, 0))
        for n in range(3):
            a(self.g1_wread(n))
        for k in range(1, 4):
            a(self.xf_read(0, k))
        for G in range(8):
            rng = self.g1_range(G)
            if G == 7:
                rng = range(rng[0], 89)
            side, valu = {}, []
            if 1 <= G <= 6:
                for k in range(4):
                    side.setdefault(rng[(0, 1, 3, 5)[k]], []).append(self.xf_read(G, k))
            dm = list(self.plan[G]) if G < 7 else self.plan[7][:2]
            if G == c.sigp + 1:
                side.setdefault(rng[0], []).append(self.signal_pre())
            if G == c.pollp:
                side.setdefault(rng[0], []).append(self.poll_issue(TMP + 2, V_POLL, 0, "pp"))
            if G == c.pollp + 1:
                side.setdefault(rng[0], []).append(self.poll_check(TMP + 2, V_POLL, 0, "pp"))
                side[rng[0]].append([f"v_and_b32 {v(TMP + 3)}, 0x1f0, {v(V_L16)}",
                                     Op(f"buffer_load_dwordx4 {v(V_REC, 4)}, {v(TMP + 3)}, {s(SRD_WS, 4)}, {s(S_STAT)} offen sc1", vm="rec")])
                dm = [self.dma(6 + t, SRD_WS, V_L16, S_CS[t], f"A{t}", extra="sc1") for t in range(2)] + dm
            if G == 6:
                valu = self.late_scalars()
            if G == 7:
                side.setdefault(rng[0], []).append([Op(f"v_mov_b32 {v(V_MU + q)}, {v(V_REC)}", nvm="rec") for q in range(4)])
                valu = self.attn_addr()
            self.spread(side, rng, dm)
            self.g1_emit(a, rng, side, valu, self.NB)
            if G < 7:
                a(self.g1_mfma(self.NB[G]))
                a(self.g1_barrier(G, ["E"] if G == c.sigp else []))
        a(self.stamp(2))

    def late_scalars(self):
        wh, wl = S_T0, S_T1
        t = f"""
        s_lshr_b32 {s(wh)}, {s(S_W)}, 1
        s_and_b32 {s(wl)}, {s(S_W)}, 1
        s_lshl_b32 {s(S_T2)}, {s(S_AI)}, 2
        s_add_u32 {s(S_T2)}, {s(S_T2)}, {s(wh)}
        s_mul_i32 {s(S_QOFF)}, {s(S_T2)}, {QKV_TB}
        s_lshl_b32 {s(S_OST)}, {s(S_T2)}, 15
        s_lshl_b32 {s(S_T2)}, {s(S_AH)}, 11
        s_add_u32 {s(S_QOFF)}, {s(S_QOFF)}, {s(S_T2)}
        s_add_u32 {s(S_QOFF)}, {s(S_QOFF)}, {QKV}
        s_lshl_b32 {s(S_T2)}, {s(wl)}, 10
        s_add_u32 {s(S_KOFF[2])}, {s(S_QOFF)}, {s(S_T2)}
        s_add_u32 {s(S_KOFF[2])}, {s(S_KOFF[2])}, {64 * 512}
        s_add_u32 {s(S_VOFF[2])}, {s(S_KOFF[2])}, {64 * 512}
        s_and_b32 {s(S_T3)}, {s(S_AH)}, 1
        s_lshl_b32 {s(S_T0)}, {s(S_T3)}, 11
        s_add_u32 {s(S_T2)}, {s(S_T2)}, {s(S_T0)}
        s_add_u32 {s(S_T2)}, {s(S_T2)}, {POISON}
        s_sub_u32 {s(S_KOFF[1])}, {s(S_KOFF[2])}, {4 * QKV_TB}
        s_sub_u32 {s(S_VOFF[1])}, {s(S_VOFF[2])}, {4 * QKV_TB}
        s_sub_u32 {s(S_KOFF[0])}, {s(S_KOFF[2])}, {8 * QKV_TB}
        s_sub_u32 {s(S_VOFF[0])}, {s(S_VOFF[2])}, {8 * QKV_TB}
        s_cmp_ge_u32 {s(S_AI)}, 1 | s_cselect_b32 {s(S_KOFF[1])}, {s(S_KOFF[1])}, {s(S_T2)} | s_cselect_b32 {s(S_VOFF[1])}, {s(S_VOFF[1])}, {s(S_T2)}
        s_cmp_ge_u32 {s(S_AI)}, 2 | s_cselect_b32 {s(S_KOFF[0])}, {s(S_KOFF[0])}, {s(S_T2)} | s_cselect_b32 {s(S_VOFF[0])}, {s(S_VOFF[0])}, {s(S_T2)}
        s_lshl_b32 {s(S_T2)}, {s(wl)}, 8
        s_add_u32 {s(S_QOFF)}, {s(S_QOFF)}, {s(S_T2)}
        s_add_u32 {s(S_OST)}, {s(S_OST)}, {s(S_T2)}
        s_lshl_b32 {s(S_T2)}, {s(S_T3)}, 14
        s_add_u32 {s(S_OST)}, {s(S_OST)}, {s(S_T2)}
        s_lshr_b32 {s(S_T2)}, {s(S_AH)}, 1
        s_lshl_b32 {s(S_T2)}, {s(S_T2)}, 10
        s_add_u32 {s(S_OST)}, {s(S_OST)}, {s(S_T2)}
        s_add_u32 {s(S_OST)}, {s(S_OST)}, {OWS}
        s_lshl_b32 {s(S_OFLAG)}, {s(S_AI)}, 8
        s_lshl_b32 {s(S_T2)}, {s(S_AH)}, 2
        s_add_u32 {s(S_OFLAG)}, {s(S_OFLAG)}, {s(S_T2)}
        s_add_u32 {s(S_OFLAG)}, {s(S_OFLAG)}, {3 * 4096}
        s_and_b32 {s(S_KQ)}, {s(S_W)}, 3
        s_lshr_b32 {s(S_T0)}, {s(S_W)}, 2
        s_lshl_b32 {s(S_T1)}, {s(S_GM)}, 1
        s_add_u32 {s(S_T1)}, {s(S_T1)}, {s(S_T0)}
        s_mul_i32 {s(S_HLD)}, {s(S_T1)}, {H_TB}
        s_mul_i32 {s(S_T2)}, {s(S_KQ)}, 28672
        s_add_u32 {s(S_HLD)}, {s(S_HLD)}, {s(S_T2)}
        s_add_u32 {s(S_HLD)}, {s(S_HLD)}, {HWS}
        s_lshl_b32 {s(S_OLD)}, {s(S_T1)}, 15
        s_lshl_b32 {s(S_T2)}, {s(S_KQ)}, 13
        s_add_u32 {s(S_OLD)}, {s(S_OLD)}, {s(S_T2)}
        s_add_u32 {s(S_OLD)}, {s(S_OLD)}, {OWS}
        s_mul_i32 {s(S_XOFF)}, {s(S_T1)}, {32 * 896}
        s_lshl_b32 {s(S_T2)}, {s(S_GN)}, 7
        s_add_u32 {s(S_XOFF)}, {s(S_XOFF)}, {s(S_T2)}
        s_lshl_b32 {s(S_T2)}, {s(S_KQ)}, 5
        s_add_u32 {s(S_XOFF)}, {s(S_XOFF)}, {s(S_T2)}
        """
        return [[x.strip() for x in l.split("|")] for l in t.strip().split("\n")]

    def attn_addr(self):
        g, l15, t0, t1, t2 = TMP + 4, TMP + 5, TMP + 6, TMP + 7, TMP + 8
        t = f"""
        v_lshrrev_b32 {v(g)}, 4, {v(V_LANE)}
        v_and_b32 {v(l15)}, 15, {v(V_LANE)}
        s_lshr_b32 {s(S_T0)}, {s(S_W)}, 1 | s_lshl_b32 {s(S_T0)}, {s(S_T0)}, 11 | s_and_b32 {s(S_T1)}, {s(S_W)}, 1 | s_lshl_b32 {s(S_T2)}, {s(S_T1)}, 8
        s_add_u32 {s(S_T0)}, {s(S_T0)}, {s(S_T2)} | s_add_u32 {s(S_T0)}, {s(S_T0)}, {14 * 8192} | s_mul_i32 {s(S_T1)}, {s(S_T1)}, 1536 | s_add_u32 {s(S_T1)}, {s(S_T1)}, 256
        v_lshlrev_b32 {v(t0)}, 4, {v(l15)}
        v_lshl_add_u32 {v(V_QLD)}, {v(g)}, 9, {v(t0)}
        v_add_u32 {v(V_KE)}, {s(S_T0)}, {v(V_QLD)}
        v_add_u32 {v(V_KO)}, {s(S_T1)}, {v(V_KE)}
        v_lshrrev_b32 {v(t1)}, 5, {v(V_LANE)}
        v_lshlrev_b32 {v(t2)}, 7, {v(t1)}
        v_xor_b32 {v(V_VD)}, {v(t2)}, {v(V_L16)}
        v_lshl_add_u32 {v(t0)}, {v(t1)}, 13, {v(t0)}
        v_and_b32 {v(t1)}, 1, {v(g)}
        v_lshl_add_u32 {v(V_OSTV)}, {v(t1)}, 9, {v(t0)}
        v_bfe_u32 {v(t0)}, {v(V_LANE)}, 1, 1
        v_lshrrev_b32 {v(t1)}, 2, {v(V_LANE)}
        v_lshlrev_b32 {v(t2)}, 3, {v(t0)}
        v_xor_b32 {v(t1)}, {v(t1)}, {v(t2)}
        v_lshlrev_b32 {v(t1)}, 4, {v(t1)}
        v_lshl_add_u32 {v(t1)}, {v(t0)}, 9, {v(t1)}
        v_and_b32 {v(t0)}, 1, {v(V_LANE)}
        v_lshl_add_u32 {v(t1)}, {v(t0)}, 3, {v(t1)}
        s_add_u32 {s(S_T0)}, {s(S_T0)}, {3 * 8192} | v_add_u32 {v(V_VE)}, {s(S_T0)}, {v(t1)}
        v_add_u32 {v(V_VO)}, {s(S_T1)}, {v(V_VE)}
        v_min_u32 {v(t0)}, 2, {v(g)}
        s_sub_u32 {s(S_T2)}, {s(S_AI)}, 2 | v_add_u32 {v(t0)}, {s(S_T2)}, {v(t0)}
        v_max_i32 {v(t0)}, 0, {v(t0)}
        v_lshlrev_b32 {v(t0)}, 8, {v(t0)}
        v_lshl_add_u32 {v(V_POLL)}, {v(l15)}, 2, {v(t0)}
        """
        return [[x.strip() for x in l.split("|")] for l in t.strip().split("\n")]

    def attn_masks(self):
        t0, t1 = XF + 4, XF + 5
        ops = [f"v_lshrrev_b32 {v(t0)}, 2, {v(V_LANE)}", f"v_and_b32 {v(t0)}, 12, {v(t0)}",
               f"v_and_b32 {v(t1)}, 15, {v(V_LANE)}", f"v_sub_u32 {v(t0)}, {v(t1)}, {v(t0)}",
               f"v_mov_b32 {v(t1)}, {NEG_BIG}"]
        for r in range(4):
            ops.append([f"v_cmp_gt_i32 vcc, {r}, {v(t0)}",
                        f"v_cndmask_b32 {v(sblk(0) + r)}, {v(t1)}, 0, vcc",
                        f"v_cndmask_b32 {v(sblk(16) + r)}, 0, {v(t1)}, vcc"])
        return ops

    def epi_qkv(self, L, k, tag):
        A = acc(L)
        P = TMP + 8 * (k & 1)
        vc = TMP + 16
        ops = [Op(f"v_mov_b32 {v(vc)}, {s(S_QC[k])}")]
        for q in range(8):
            ops.append(Op(f"v_mul_f32 {v(A + 2 * q)}, {v(V_REC + 1)}, {v(A + 2 * q)}"))
            ops.append(Op(f"v_mul_f32 {v(A + 2 * q + 1)}, {v(V_REC + 1)}, {v(A + 2 * q + 1)}"))
        for q in range(8):
            ops.append(Op(f"v_cvt_pk_bf16_f32 {v(P + q)}, {v(A + 2 * q)}, {v(A + 2 * q + 1)}"))
        ops += [Op(f"v_cndmask_b32 {v(P)}, {v(P)}, {v(vc)}, {s(S_MB, 2)}"),
                Op(f"v_cndmask_b32 {v(P + 1)}, {v(P + 1)}, 0, {s(S_MB, 2)}"),
                Op(f"v_cndmask_b32 {v(P + 6)}, {v(P + 6)}, {v(vc)}, {s(S_MA, 2)}"),
                Op(f"v_cndmask_b32 {v(P + 7)}, {v(P + 7)}, 0, {s(S_MA, 2)}")]
        for h2 in range(2):
            p = P + 4 * h2
            ops.append(Op(f"v_permlane32_swap_b32 {v(p)}, {v(p + 2)}"))
            ops.append(Op(f"v_permlane32_swap_b32 {v(p + 1)}, {v(p + 3)}"))
        for h2 in range(2):
            ops.append(Op(f"buffer_store_dwordx4 {v(P + 4 * h2, 4)}, {v(V_L16)}, {s(SRD_WS, 4)}, {s(S_QST[k])} offen offset:{1024 * h2} sc1",
                          vm=f"{tag}{h2}"))
        return ops

    def epi_h(self, Lg, Lu, tag):
        G, U = acc(Lg), acc(Lu)
        ops = []
        for b in range(4):
            e = TMP + 16 + 4 * (b & 1)
            out = TMP + 8 * (b >> 1)
            r = range(4 * b, 4 * b + 4)
            ops += [Op(f"v_mul_f32 {v(e + q)}, {v(V_REC + 2)}, {v(G + i)}") for q, i in enumerate(r)]
            ops += [Op(f"v_exp_f32 {v(e + q)}, {v(e + q)}") for q in range(4)]
            ops += [Op(f"v_mul_f32 {v(G + i)}, {v(G + i)}, {v(U + i)}") for i in r]
            ops += [Op(f"v_fma_f32 {v(e + q)}, {v(e + q)}, {v(V_REC + 3)}, {v(V_REC + 3)}") for q in range(4)]
            ops += [Op(f"v_rcp_f32 {v(e + q)}, {v(e + q)}") for q in range(4)]
            ops += [Op(f"v_mul_f32 {v(G + i)}, {v(G + i)}, {v(e + q)}") for q, i in enumerate(r)]
            o = out + 2 * (b & 1)
            ops += [Op(f"v_cvt_pk_bf16_f32 {v(o)}, {v(G + 4 * b)}, {v(G + 4 * b + 1)}"),
                    Op(f"v_cvt_pk_bf16_f32 {v(o + 1)}, {v(G + 4 * b + 2)}, {v(G + 4 * b + 3)}")]
            if b & 1:
                va = V_L16 if b == 1 else V_H2
                ops.append(Op(f"buffer_store_dwordx4 {v(out, 4)}, {v(va)}, {s(SRD_WS, 4)}, {s(S_HA)} offen sc1", vm=f"{tag}{b >> 1}"))
        return ops

    def gemm1_pass2(self, a, typec):
        c = self.cfg
        if typec:
            epi = self.epi_qkv(0, 0, "q") + self.epi_qkv(1, 1, "q") + self.epi_qkv(2, 2, "q") + self.attn_masks()
            n = len(epi) - 9
            cut = [0, 30, 75, n, n, len(epi), len(epi), len(epi), len(epi)]
        else:
            epi = self.epi_qkv(0, 0, "q") + self.epi_h(1, 2, "ha") + self.attn_masks()
            cut = [0, 18, 40, 62, 84, 106, 128, len(epi) - 3, len(epi)]
        for G in range(7, 15):
            lo = 89 if G == 7 else self.NB[G - 1]
            hi = self.NB[G] if G < 14 else len(self.SEQ)
            rng = range(lo, hi)
            side = {}
            dm = self.plan[7][2:] if G == 7 else (self.plan[G] if G < 14 else [])
            valu = epi[cut[G - 7]:cut[G - 6]]
            if G == 7:
                valu = [[]] * 2 + valu
            if G == c.sig0 + 1:
                side.setdefault(rng[0], []).append(self.signal_g1(0, XF + 1))
            if G == c.poll0:
                side.setdefault(rng[0], []).append(self.poll_issue(XF, V_POLL, 0, "p0"))
            self.spread(side, rng, dm, 0 if G == 7 else 1)
            self.g1_emit(a, rng, side, valu, self.NB)
            if G < 14:
                a(self.g1_mfma(self.NB[G]))
                a(self.g1_barrier(G, ["q1"] if G == c.sig0 else []))

    def h_load(self, gr):
        ops = []
        if gr and gr % 4 == 0:
            ops.append(Op(f"s_add_u32 {s(S_HLD)}, {s(S_HLD)}, 4096"))
        ops.append(Op(f"buffer_load_dwordx4 {v(XF + 4 * gr, 4)}, {v(V_L16)}, {s(SRD_WS, 4)}, {s(S_HLD)} offen offset:{1024 * (gr % 4)} sc1",
                      vm=f"h{gr}"))
        return ops

    def k_read(self, b):
        return Op(f"ds_read_b128 {v(WF + 4 * (b & 3), 4)}, {v(V_KO if b & 1 else V_KE)} offset:{(b >> 1) * 2048}", lg=f"k{b}")

    def v_read(self, m):
        p, dh = m >> 1, m & 1
        d = WF + 4 * (m & 3)
        ops = [Op(f"ds_read_b64_tr_b16 {v(d, 2)}, {v(V_VE)} offset:{p * 2048 + dh * 1024}", lg=f"v{m}" if p == 8 else f"v{m}a")]
        if p < 8:
            ops.append(Op(f"ds_read_b64_tr_b16 {v(d + 2, 2)}, {v(V_VO)} offset:{p * 2048 + dh * 1024}", lg=f"v{m}"))
        return ops

    def pv_mfma(self, m):
        p, dh = m >> 1, m & 1
        o = v(OACC + 4 * dh, 4)
        if p < 8:
            return Op(f"v_mfma_f32_16x16x32_bf16 {o}, {v(WF + 4 * (m & 3), 4)}, {v(sblk(2 * p), 4)}, {'0' if p == 0 else o}", nlg=f"v{m}")
        return Op(f"v_mfma_f32_16x16x16_bf16 {o}, {v(WF + 4 * (m & 3), 2)}, {v(S16, 2)}, {o}", nlg=f"v{m}")

    def attention_entry(self, a):
        a(self.stamp(3))
        a(self.poll_check(XF, V_POLL, 0, "p0"))
        l = self.lab("epoch")
        a(f"""
        s_or_b32 {s(S_T0)}, s2, {s(S_W)}
        s_cmp_lg_u32 {s(S_T0)}, 0
        s_cbranch_scc1 {l}
        v_mov_b32 {v(XF + 1)}, {s(S_NONCE)}
        s_mov_b32 {s(S_T0)}, {EPOCH}
        s_mov_b64 exec, 1
        buffer_store_dword {v(XF + 1)}, off, {s(SRD_WS, 4)}, {s(S_T0)} sc1
        s_mov_b64 exec, -1
        {l}:
        s_add_u32 {s(S_HA)}, {s(S_HA)}, {12 * 1024}
        """)
        req = [[Op(f"buffer_load_dwordx4 {v(V_Q, 4)}, {v(V_QLD)}, {s(SRD_WS, 4)}, {s(S_QOFF)} offen sc1", vm="Q")]]
        req += [self.dma(14 + t, SRD_WS, V_L16, S_KOFF[t], f"K{t}", extra="sc1") for t in range(3)]
        req += [self.dma(17 + t, SRD_WS, V_VD, S_VOFF[t], f"V{t}", extra="sc1") for t in range(3)]
        req += self.plan["rest"] + [self.bdma(10), self.bdma(11)]
        epi = self.epi_h(3, 4, "hb")
        a(req[:2])
        a(interleave([[o] for o in epi], req[2:], 0, 50))
        a(f"""
        v_and_b32 {v(V_GP)}, 15, {v(V_LANE)}
        v_lshlrev_b32 {v(V_GP)}, 2, {v(V_GP)}
        s_lshr_b32 {s(S_T0)}, {s(S_GM)}, 1
        s_lshl_b32 {s(S_T0)}, {s(S_T0)}, 8
        s_add_u32 {s(S_T0)}, {s(S_T0)}, {2 * 4096}
        v_add_u32 {v(V_GP)}, {s(S_T0)}, {v(V_GP)}
        """)

    def attention(self, a):
        c = self.cfg
        a(self.barrier(nvm=("Q", "K0", "K1", "K2", "V0", "V1", "V2")))
        a(self.stamp(4))
        for b in range(3):
            a(self.k_read(b))
        late = [self.bdma(12), self.bdma(13)]
        for b in range(17):
            cin = v(sblk(b), 4) if b in (0, 16) else "0"
            a(Op(f"v_mfma_f32_16x16x32_bf16 {v(sblk(b), 4)}, {v(WF + 4 * (b & 3), 4)}, {v(V_Q, 4)}, {cin}", nlg=f"k{b}"))
            if b + 3 < 17:
                a(self.k_read(b + 3))
            if b in (2, 8):
                a(late.pop(0))
        for m in range(3):
            a(self.v_read(m))
        m0, m1 = V_PT, V_PT + 1
        sc = [sblk(b) + r for b in range(17) for r in range(4)]
        a(f"v_max3_f32 {v(m0)}, {v(sc[0])}, {v(sc[1])}, {v(sc[2])}")
        a(f"v_max3_f32 {v(m1)}, {v(sc[3])}, {v(sc[4])}, {v(sc[5])}")
        for q in range(31):
            mm = m0 if q % 2 == 0 else m1
            a(f"v_max3_f32 {v(mm)}, {v(sc[6 + 2 * q])}, {v(sc[7 + 2 * q])}, {v(mm)}")
        a(self.barrier(nvm=("hb0", "hb1")))
        a(self.signal_g1(2, V_PT + 2))
        a(f"""
        v_max_f32 {v(m0)}, {v(m0)}, {v(m1)}
        v_mov_b32 {v(m1)}, {v(m0)}
        v_permlane32_swap_b32 {v(m0)}, {v(m1)}
        v_max_f32 {v(m0)}, {v(m0)}, {v(m1)}
        v_mov_b32 {v(m1)}, {v(m0)}
        v_permlane16_swap_b32 {v(m0)}, {v(m1)}
        v_max_f32 {v(m0)}, {v(m0)}, {v(m1)}
        s_mov_b32 {s(S_T0)}, {C_EXP}
        v_mul_f32 {v(m0)}, -{v(m0)}, {s(S_T0)}
        """)
        hl = [self.h_load(g) for g in range(28)]
        for p in range(9):
            r = list(range(sblk(2 * p), sblk(2 * p) + (8 if p < 8 else 4)))
            ops = [f"v_fma_f32 {v(x)}, {v(x)}, {s(S_T0)}, {v(m0)}" for x in r]
            ops += [f"v_exp_f32 {v(x)}, {v(x)}" for x in r]
            ops += [f"v_cvt_pk_bf16_f32 {v(r[0] + q)}, {v(r[2 * q])}, {v(r[2 * q + 1])}" for q in range(len(r) // 2)]
            side = []
            if p >= 1:
                for m in (2 * p - 2, 2 * p - 1):
                    side.append([self.pv_mfma(m)] + (self.v_read(m + 3) if m + 3 < 18 else []))
            if p == c.hbpos - 1:
                side.append(self.poll_issue(V_PT + 2, V_GP, 0, "ph"))
            if p == c.hbpos:
                side.append(self.poll_check(V_PT + 2, V_GP, 0, "ph"))
            if p >= c.hbpos and c.stop > 2:
                k = (28 + 8 - c.hbpos) // (9 - c.hbpos)
                side += hl[:k]
                hl = hl[k:]
            a(interleave([[o] for o in ops], side, 2))
        a(self.pv_mfma(16))
        a(self.pv_mfma(17))
        if c.stop > 2:
            a(hl)
        le, lj = self.lab("even"), self.lab("den")
        t0, t1 = V_PT, V_PT + 1
        a(f"""
        s_bitcmp0_b32 {s(S_AH)}, 0
        s_cbranch_scc1 {le}
        s_nop 7
        v_mov_b32 {v(t0)}, {v(OACC)}
        v_mov_b32 {v(t1)}, {v(OACC)}
        s_mov_b64 vcc, 0xffff
        v_permlane32_swap_b32 {v(t0)}, {v(t1)}
        v_cndmask_b32 {v(OACC)}, {v(OACC)}, 0, vcc
        v_mov_b32 {v(t1)}, {v(t0)}
        s_nop 1
        v_permlane16_swap_b32 {v(t0)}, {v(t1)}
        s_branch {lj}
        {le}:
        s_nop 7
        v_mov_b32 {v(t0)}, {v(OACC + 4)}
        v_mov_b32 {v(t1)}, {v(OACC + 4)}
        s_mov_b32 vcc_lo, 0
        s_mov_b32 vcc_hi, 0xffff0000
        v_permlane32_swap_b32 {v(t1)}, {v(t0)}
        v_cndmask_b32 {v(OACC + 4)}, {v(OACC + 4)}, 0, vcc
        v_mov_b32 {v(t1)}, {v(t0)}
        s_nop 1
        v_permlane16_swap_b32 {v(t1)}, {v(t0)}
        {lj}:
        s_nop 1
        v_rcp_f32 {v(t0)}, {v(t0)}
        """)
        for q in range(8):
            a(f"v_mul_f32 {v(OACC + q)}, {v(t0)}, {v(OACC + q)}")
        for q in range(4):
            a(f"v_cvt_pk_bf16_f32 {v(OACC + q)}, {v(OACC + 2 * q)}, {v(OACC + 2 * q + 1)}")
        a(f"v_permlane32_swap_b32 {v(OACC)}, {v(OACC + 2)}\nv_permlane32_swap_b32 {v(OACC + 1)}, {v(OACC + 3)}")
        a(Op(f"buffer_store_dwordx4 {v(OACC, 4)}, {v(V_OSTV)}, {s(SRD_WS, 4)}, {s(S_OST)} offen sc1", vm="o"))
        a(self.stamp(5))

    def g3_addr(self):
        hh, t2, t3, t4 = TMP + 16, TMP + 17, TMP + 18, TMP + 19
        t = f"""
        v_lshrrev_b32 {v(hh)}, 5, {v(V_LANE)}
        v_bfe_u32 {v(t2)}, {v(V_LANE)}, 2, 2
        v_lshl_add_u32 {v(t3)}, {v(hh)}, 2, {v(t2)}
        s_lshl_b32 {s(S_T0)}, {s(S_KQ)}, 4
        v_add_u32 {v(t3)}, {s(S_T0)}, {v(t3)}
        v_lshlrev_b32 {v(t3)}, 7, {v(t3)}
        v_lshrrev_b32 {v(t2)}, 1, {v(t2)}
        v_lshl_add_u32 {v(t3)}, {v(t2)}, 6, {v(t3)}
        v_bfe_u32 {v(t2)}, {v(V_LANE)}, 4, 1
        v_lshl_add_u32 {v(t3)}, {v(t2)}, 5, {v(t3)}
        v_and_b32 {v(t2)}, 3, {v(V_LANE)}
        v_lshl_add_u32 {v(V_GA[0][0])}, {v(t2)}, 3, {v(t3)}
        v_xor_b32 {v(V_GA[0][1])}, 64, {v(V_GA[0][0])}
        v_add_u32 {v(V_GA[1][0])}, 0x10000, {v(V_GA[0][0])}
        v_add_u32 {v(V_GA[1][1])}, 0x10000, {v(V_GA[0][1])}
        v_add_u32 {v(V_GA[2][0])}, 0x20000, {v(V_GA[0][0])}
        v_add_u32 {v(V_GA[2][1])}, 0x20000, {v(V_GA[0][1])}
        """
        return [l.strip() for l in t.strip().split("\n")]

    def g3_addr2(self):
        hh, t2 = TMP + 16, TMP + 17
        t = f"""
        s_lshr_b32 {s(S_T0)}, {s(S_W)}, 2
        s_lshl_b32 {s(S_T0)}, {s(S_T0)}, 13
        v_add_u32 {v(V_EW[0])}, {s(S_T0)}, {v(V_L16)}
        v_add_u32 {v(V_EW[1])}, 0x20000, {v(V_EW[0])}
        s_lshl_b32 {s(S_T0)}, {s(S_KQ)}, 11
        v_add_u32 {v(V_ER[0])}, {s(S_T0)}, {v(V_EW[0])}
        v_add_u32 {v(V_ER[1])}, {s(S_T0)}, {v(V_EW[1])}
        v_and_b32 {v(t2)}, 31, {v(V_LANE)}
        v_mul_u32_u24 {v(t2)}, 896, {v(t2)}
        v_lshl_add_u32 {v(V_XO)}, {v(hh)}, 4, {v(t2)}
        """
        return [l.strip() for l in t.strip().split("\n")]

    def g3_read(self, n):
        gi, ch = n >> 1, n & 1
        slot = self.B_SLOT[gi] if gi < 28 else self.WO_SLOT[gi - 28]
        off = (slot & 7) * 8192
        d = WF + 4 * (n & 3)
        va = V_GA[slot >> 3][ch] if gi < 28 else V_GA[2][ch] if slot >> 3 else V_GA[0][ch]
        return [Op(f"ds_read_b64_tr_b16 {v(d, 2)}, {v(va)} offset:{off}", lg=f"g{n}a"),
                Op(f"ds_read_b64_tr_b16 {v(d + 2, 2)}, {v(va)} offset:{off + 1024}", lg=f"g{n}")]

    def g3_mfma(self, n):
        gi, ch = n >> 1, n & 1
        d = (FACC if gi < 28 else SACC) + 16 * ch
        b = XF + 4 * (gi if gi < 28 else gi - 28)
        c = "0" if gi in (0, 28) else v(d, 16)
        return Op(f"v_mfma_f32_32x32x16_bf16 {v(d, 16)}, {v(WF + 4 * (n & 3), 4)}, {v(b, 4)}, {c}",
                  nlg=f"g{n}", nvm=f"h{gi}" if gi < 28 else f"o{gi - 28}")

    def area_addr(self, regs, t, off):
        if t < 2:
            return regs[1], self.AREA[t] - 0x20000 + off
        return regs[0], self.AREA[t] + off

    def exchange_write(self, a, base):
        done = self.lab("xw")
        labs = [self.lab("xq") for _ in range(4)]
        a("s_nop 7\ns_nop 3")
        for kq in range(4):
            if kq < 3:
                a(f"s_cmp_lg_u32 {s(S_KQ)}, {kq}\ns_cbranch_scc1 {labs[kq]}")
            for Q in range(4):
                if Q == kq:
                    continue
                for hf in range(2):
                    r, off = self.area_addr(V_EW, (kq - Q - 1) % 4, Q * 2048 + hf * 1024)
                    a(f"ds_write_b128 {v(r)}, {v(base + 8 * Q + 4 * hf, 4)} offset:{off}")
            for q in range(8):
                a(f"v_mov_b32 {v(V_SUM + q)}, {v(base + 8 * kq + q)}")
            if kq < 3:
                a(f"s_branch {done}\n{labs[kq]}:")
        a.label(done)

    def exchange_read(self):
        ops = []
        for t in range(3):
            for hf in range(2):
                r, off = self.area_addr(V_ER, t, hf * 1024)
                ops.append(Op(f"ds_read_b128 {v(V_RD + 8 * t + 4 * hf, 4)}, {v(r)} offset:{off}", lg=f"e{t}{hf}"))
        for t in range(3):
            for q in range(8):
                ops.append(Op(f"v_add_f32 {v(V_SUM + q)}, {v(V_SUM + q)}, {v(V_RD + 8 * t + q)}", nlg=f"e{t}{q >> 2}"))
        return ops

    def gemm3(self, a):
        c = self.cfg
        a(self.g3_addr())
        a(self.barrier(nvm=("B0", "B1", "B2", "B3"), nlg=()))
        for n in range(3):
            a(self.g3_read(n))
        issue = {0: [self.bdma(b) for b in range(14, 18)], 1: [self.bdma(b) for b in range(18, 20)],
                 2: [self.bdma(b) for b in range(20, 24)], 3: [self.bdma(b) for b in range(24, 28)],
                 4: [self.wodma(b) for b in range(4)], 5: [self.wodma(b) for b in range(4, 8)]}
        nb = [8 * st + 5 for st in range(7)]
        for G in range(8):
            rng = range(nb[G - 1] if G else 0, nb[G] if G < 7 else 56)
            side = {}
            if G == 1:
                side[rng[0]] = [self.signal([], S_OFLAG, V_SUM)]
            if G == c.pollo:
                side.setdefault(rng[0], []).append(self.poll_issue(V_SUM + 1, V_GP, "s" + str(S_T1), "po"))
            if G == c.pollo - 1:
                side.setdefault(rng[0], []).append(f"s_movk_i32 {s(S_T1)}, 4096")
            if G == 2:
                for q, o in enumerate(self.g3_addr2()):
                    side.setdefault(rng[1 + q // 2], []).append(o)
            if G == 6:
                side.setdefault(rng[1], []).append(
                    Op(f"buffer_load_dwordx4 {v(V_XRES, 4)}, {v(V_XO)}, {s(SRD_X, 4)}, {s(S_XOFF)} offen", vm="xr"))
            self.spread(side, rng, issue.get(G, []), 0 if G == 0 else 1)
            for n in rng:
                if n not in nb or n != rng[0]:
                    a(self.g3_mfma(n))
                if n + 3 < 56:
                    a(self.g3_read(n + 3))
                a(side.get(n, []))
            if G < 7:
                a(self.g3_mfma(nb[G]))
                if G < 6:
                    a(self.barrier(nvm=[f"B{b}" for b in range(4 * G + 4, 4 * G + 8)] + (["o"] if G == 0 else [])))
                else:
                    a(self.barrier())
        a(self.stamp(6))
        a(self.poll_check(V_SUM + 1, V_GP, "s" + str(S_T1), "po"))
        for g in range(8):
            if g == 4:
                a(f"s_add_u32 {s(S_OLD)}, {s(S_OLD)}, 4096")
            a(Op(f"buffer_load_dwordx4 {v(XF + 4 * g, 4)}, {v(V_L16)}, {s(SRD_WS, 4)}, {s(S_OLD)} offen offset:{1024 * (g % 4)} sc1", vm=f"o{g}"))
        self.exchange_write(a, FACC)
        a(f"""
        s_lshr_b32 {s(S_T0)}, {s(S_KQ)}, 1
        s_lshl_b32 {s(S_T0)}, {s(S_T0)}, 10
        v_subrev_u32 {v(V_GA[0][0])}, {s(S_T0)}, {v(V_GA[0][0])}
        v_subrev_u32 {v(V_GA[0][1])}, {s(S_T0)}, {v(V_GA[0][1])}
        v_subrev_u32 {v(V_GA[2][0])}, {s(S_T0)}, {v(V_GA[1][0])}
        v_subrev_u32 {v(V_GA[2][1])}, {s(S_T0)}, {v(V_GA[1][1])}
        """)
        a.drain(vm=False)
        a(self.barrier(nvm=[f"WO{b}" for b in range(8)]))
        for n in range(56, 59):
            a(self.g3_read(n))
        F = V_SUM + 8
        e = TMP + 16
        valu = self.exchange_read()
        valu += [Op(f"v_mul_f32 {v(e + q)}, 0xbfb8aa3b, {v(V_SUM + q)}") for q in range(8)]
        valu += [Op(f"v_exp_f32 {v(e + q)}, {v(e + q)}") for q in range(8)]
        valu += [Op(f"v_add_f32 {v(e + q)}, 1.0, {v(e + q)}") for q in range(8)]
        valu += [Op(f"v_rcp_f32 {v(e + q)}, {v(e + q)}") for q in range(8)]
        valu += [Op(f"v_mul_f32 {v(F + q)}, {v(V_SUM + q)}, {v(e + q)}") for q in range(8)]
        for q in range(4):
            valu += [Op(f"v_lshlrev_b32 {v(e + 2 * q)}, 16, {v(V_XRES + q)}", nvm="xr"),
                     Op(f"v_and_b32 {v(e + 2 * q + 1)}, 0xffff0000, {v(V_XRES + q)}")]
        a(valu[:30])
        main = [[self.g3_mfma(n)] + (self.g3_read(n + 3) if n + 3 < 72 else []) for n in range(56, 72)]
        a(interleave(main, valu[30:], 0, 14))
        a(self.barrier())
        self.exchange_write(a, SACC)
        a.drain(vm=False)
        a(self.barrier())
        a(self.exchange_read())
        for q in range(8):
            a(f"v_mul_f32 {v(V_SUM + q)}, {v(V_SUM + q)}, {v(F + q)}")
        for q in range(4):
            a(f"v_permlane32_swap_b32 {v(V_SUM + q)}, {v(V_SUM + 4 + q)}")
        for q in range(8):
            a(f"v_add_f32 {v(V_SUM + q)}, {v(V_SUM + q)}, {v(e + q)}")
        for q in range(4):
            a(f"v_cvt_pk_bf16_f32 {v(V_SUM + q)}, {v(V_SUM + 2 * q)}, {v(V_SUM + 2 * q + 1)}")
        a(Op(f"buffer_store_dwordx4 {v(V_SUM, 4)}, {v(V_XO)}, {s(SRD_OUT, 4)}, {s(S_XOFF)} offen", vm="out"))

    def finish(self, a):
        if self.cfg.prof == 2:
            a(f"""
            s_memtime s[98:99]
            s_memrealtime s[34:35]
            s_load_dwordx2 {s(SRD_W2, 2)}, s[0:1], 64
            s_waitcnt lgkmcnt(0)
            s_and_b32 {s(SRD_W2 + 1)}, {s(SRD_W2 + 1)}, 0xffff
            s_mov_b32 {s(SRD_W2 + 2)}, 64
            s_lshl_b32 {s(S_T0)}, {s(S_W)}, 8
            s_add_u32 {s(S_T0)}, {s(S_T0)}, s2
            s_cmp_eq_u32 {s(S_T0)}, {self.cfg.dbgwg}
            s_cselect_b32 {s(S_T1)}, 32, 64
            s_cmp_eq_u32 {s(S_T0)}, 0
            s_cselect_b32 {s(S_T0)}, 0, {s(S_T1)}
            s_sub_u32 s34, s34, {s(S_PROF + 14)}
            s_mov_b64 exec, 1
            """)
            for k, r in enumerate([34] + [S_PROF + 2 * k for k in range(1, 7)] + [98]):
                if k:
                    a(f"s_sub_u32 s{r}, s{r}, {s(S_PROF)}")
                a(f"v_mov_b32 {v(TMP)}, s{r}")
                a(f"buffer_store_dword {v(TMP)}, off, {s(SRD_W2, 4)}, {s(S_T0)} offset:{4 * k}")
                a("s_nop 1")
        elif self.cfg.prof:
            a(self.stamp(7))
            a("s_waitcnt lgkmcnt(0)")
            a(f"""
            s_lshl_b32 {s(S_T0)}, s2, 3
            s_add_u32 {s(S_T0)}, {s(S_T0)}, {s(S_W)}
            s_lshl_b32 {s(S_T0)}, {s(S_T0)}, 6
            s_add_u32 {s(S_T0)}, {s(S_T0)}, {PROF}
            s_mov_b64 exec, 1
            """)
            for k in range(8):
                a(f"v_mov_b32 {v(TMP)}, {s(S_PROF + 2 * k)}")
                a(f"buffer_store_dword {v(TMP)}, off, {s(SRD_WS, 4)}, {s(S_T0)} offset:{4 * k}")
                a("s_nop 1")

    def build(self):
        c = self.cfg
        a = Stream()
        self.prologue(a)
        self.gemm1_pass1(a)
        a(f"s_cmp_ge_u32 {s(S_J)}, 12\ns_cbranch_scc1 L_typec")
        t = a.fork()
        self.gemm1_pass2(a, False)
        t.label("L_typec")
        self.gemm1_pass2(t, True)
        join(a, t)
        t("s_nop 1\ns_branch L_join")
        a.label("L_join")
        self.attention_entry(a)
        self.attention(a)
        n = a.fork()
        if c.stop > 2:
            a(f"s_cmp_eq_u32 {s(S_GN)}, 7\ns_cbranch_scc1 L_noout")
            self.gemm3(a)
            a.label("L_fin")
        else:
            a("s_branch L_noout\nL_fin:")
        n.label("L_noout")
        n.drain()
        n(self.barrier())
        n(self.signal([], S_OFLAG, V_SUM))
        n("s_branch L_fin")
        self.finish(a)
        a.label("L_end")
        a("s_endpgm")
        body = a.text() + t.text() + n.text() + "\n".join(("    " + l if not l.endswith(":") else l) for l in self.tail) + "\n"
        print(f"nops {a.nops + t.nops}, waits {a.waits}, lines {len(a.out)} + {len(t.out)}", file=sys.stderr)
        return wrap([(NAME + "_kernel", body, 256, 102, 256)], [(NAME + "_kernel", 256, 512, 163840)])


if __name__ == "__main__":
    cfg = Cfg()
    for arg in sys.argv[2:]:
        k, _, val = arg.partition("=")
        setattr(cfg, k, type(getattr(cfg, k))(val))
    open(sys.argv[1], "w").write(Gen(cfg).build())
```

```python
import sys
from emit import Stream, Op, interleave, join
from asmgen import NAME, wrap

FLAGS = 0x0
EPOCH = 0x8000
STAT = 0x10000
CS = 0x20000
POISON = 0x70000
QKV = 0x100000
HWS = 0x800000
OWS = 0x1000000
PROF = 0x1400000
WS_RECORDS = 0x2000000
QKV_TB, H_TB, O_TB = 192 * 512, 4 * 28 * 1024, 4 * 8 * 1024
NEG_BIG = 0xF149F2CA
C_EXP = 0x3E8B97F6

V_H2, V_LANE, V_L16, V_WQ, V_WF, V_WL, V_W2, V_XD, V_POLL = range(9)
V_XR = [9, 10, 11, 12]
V_WA = [13, 14, 15]
XF, ACC, WF, TMP = 16, 128, 208, 224
V_REC, V_MU = TMP + 24, TMP + 28
V_QLD, V_OSTV, V_VD, V_GP = V_WQ, V_WL, V_XD, V_WF
V_KE, V_KO, V_VE, V_VO = V_XR
V_Q = TMP + 28
S16, SP, OACC, V_PT = ACC, ACC + 4, ACC + 68, ACC + 76
FACC, SACC = ACC, ACC + 32
V_GA = [[TMP + 0, TMP + 1], [TMP + 2, TMP + 3], [TMP + 4, TMP + 5]]
V_EW, V_ER, V_XO = [TMP + 6, TMP + 7], [TMP + 8, TMP + 9], TMP + 10
V_XRES, V_SUM, V_RD = TMP + 12, ACC + 64, XF + 48

S_MA = 32
S_W, S_I, S_J, S_LDSW, S_NONCE = 3, 4, 5, 6, 7
S_LOFF = [8, 9, 10, 11, 12]
S_STEP12, S_X0, S_X1 = 13, 14, 15
S_PROF = 16
SRD_E = 32
SRD_X, SRD_WS, SRD_Q, SRD_L1, SRD_L2, SRD_W1, SRD_W3, SRD_W2, SRD_WO, SRD_OUT = range(36, 76, 4)
S_QST, S_QC = [76, 77, 78], [79, 80, 81]
S_HA, S_FLAG, S_MB = 82, 83, 84
S_CS, S_STAT = [86, 87], 88
S_BOFF, S_WOFF, S_AI, S_AH, S_GM = 89, 90, 91, 92, 93
S_T0, S_T1, S_T2, S_T3 = 94, 95, 96, 97
S_P98 = 98
S_SPIN, S_GN = 100, 101
S_KOFF, S_VOFF = [SRD_Q, SRD_Q + 1, SRD_Q + 2], [SRD_L1, SRD_L1 + 1, SRD_L1 + 2]
S_QOFF, S_OST, S_OFLAG = SRD_Q + 3, SRD_L1 + 3, SRD_L2
S_HLD, S_OLD, S_XOFF = SRD_L2 + 1, SRD_L2 + 2, SRD_L2 + 3
S_KQ = S_X0
S_EST, S_ESTEP = S_P98, S_P98 + 1


def v(i, n=1):
    return f"v{i}" if n == 1 else f"v[{i}:{i + n - 1}]"


def s(i, n=1):
    return f"s{i}" if n == 1 else f"s[{i}:{i + n - 1}]"


def acc(L):
    return ACC + 16 * L


def sblk(b):
    return S16 if b == 16 else SP + 4 * b


class Cfg:
    prof = 0
    dbgwg = 133
    st = "binit,p1end,p2end,abar,aend,fend"
    stop = 99
    map1 = "4x8"
    n_pre = 10
    n_post = 0
    cap1 = 5
    cap2 = 3
    sigp = 0
    pollp = 4
    sig0 = 9
    poll0 = 13
    pollo = 5
    hbpos = 3
    pf = 1


class Gen:
    def __init__(self, cfg):
        self.cfg = cfg
        self.nlab = 0
        self.tail = []

    def lab(self, base):
        self.nlab += 1
        return f"L_{base}_{self.nlab}"

    def stamp(self, name):
        names = self.cfg.st.split(",")
        if self.cfg.prof and name in names:
            return [f"s_memtime {s(S_PROF + 2 + 2 * names.index(name), 2)}"]
        return []

    def dma(self, slot, srd, voff, soff, tag, step=None, extra=""):
        ops = [Op(f"s_add_u32 m0, {s(S_LDSW)}, {slot * 8192}")]
        if step is not None:
            ops.append(Op(f"s_add_u32 {s(soff)}, {s(soff)}, {step}"))
        ops.append(Op(f"buffer_load_dwordx4 {v(voff)}, {s(srd, 4)}, {s(soff)} offen {extra} lds".replace("  ", " "), vm=tag))
        return ops

    W_UNITS = [(L, g) for g in range(7) for L in (0, 1, 2)] + [(L, g) for g in range(7) for L in (3, 4)]
    W_SLOT = list(range(8, 20)) + list(range(8, 20)) + [0, 1, 8, 9, 10, 2, 3, 11, 12, 13, 4]
    B_SLOT = [5, 6, 7, 0, 1, 8, 9, 10, 2, 3, 11, 12, 13, 4, 14, 15, 16, 17, 18, 19, 5, 6, 7, 0, 1, 8, 9, 10]
    WO_SLOT = [2, 3, 11, 12, 13, 4, 14, 15]
    AREA = [16 * 8192, 18 * 8192, 6 * 8192]

    def wdma(self, u):
        L, g = self.W_UNITS[u]
        srd = [SRD_Q, SRD_L1, SRD_L2, SRD_W1, SRD_W3][L]
        voff = [V_WQ, V_WL, V_WL, V_WF, V_WF][L]
        step = [64 * 2688, s(S_STEP12), s(S_STEP12), 64 * 3584, 64 * 3584][L]
        return self.dma(self.W_SLOT[u], srd, voff, S_LOFF[L], f"W{u}", step if g else None)

    def xdma(self, g, t):
        return self.dma(2 * (g & 3) + t, SRD_X, V_XD, S_X0 + t, f"X{g}{t}", 128 if g else None)

    def bdma(self, b):
        return self.dma(self.B_SLOT[b], SRD_W2, V_W2, S_BOFF, f"B{b}", 64 * 896 if b else None)

    def wodma(self, b):
        return self.dma(self.WO_SLOT[b], SRD_WO, V_W2, S_WOFF, f"WO{b}", 56 * 896 if b else None)

    def g1_dma_plan(self):
        c = self.cfg
        q = []
        for g in range(7):
            q += [(max(g - 3, 0), g - 1, self.xdma(g, t)) for t in range(2)]
            q += [(max(g - 2, 0) if g > 3 else 0, g - 1, self.wdma(u)) for u in range(3 * g, 3 * g + 3)]
        first = {21: 5, 22: 5, 23: 5, 24: 5, 25: 5, 26: 6, 27: 6, 28: 6, 29: 6, 30: 6, 31: 7, 32: 7, 33: 7, 34: 7}
        for u in range(21, 35):
            q.append((first[u], 6 + (u - 21) // 2, self.wdma(u)))
        for b, e in enumerate((7, 8, 8, 10, 11, 11, 12, 12, 13, 13)):
            q.append((e, 99, self.bdma(b)))
        n0 = c.n_pre + c.n_post
        init = [x[2] for x in q[:n0]]
        q = q[n0:]
        plan = {}
        for G in range(14):
            cap = c.cap1 if G < 7 else c.cap2
            if G == c.pollp + 1:
                cap -= 2
            pick = [x for x in q if x[0] <= G][:cap]
            for x in pick:
                assert G <= x[1], ("late DMA", G, x[2][-1].vm)
                q.remove(x)
            plan[G] = [x[2] for x in pick]
        assert all(x[1] == 99 for x in q)
        plan["rest"] = [x[2] for x in q]
        return init, plan

    def signal(self, soff_ops, soff, vt):
        l = self.lab("sig")
        return [[f"s_cmp_lg_u32 {s(S_W)}, 0", f"s_cbranch_scc1 {l}",
                 f"v_mov_b32 {v(vt)}, {s(S_NONCE)}", "s_mov_b64 exec, 1"] + soff_ops +
                [f"buffer_store_dword {v(vt)}, off, {s(SRD_WS, 4)}, {s(soff)} sc1",
                 "s_mov_b64 exec, -1", f"{l}:"]]

    def signal_g1(self, stage, vt):
        return self.signal([f"s_add_u32 {s(S_T3)}, {s(S_FLAG)}, {stage * 4096}"], S_T3, vt)

    def signal_pre(self):
        l = self.lab("sigp")
        return [[f"s_cmp_lg_u32 {s(S_W)}, 0", f"s_cbranch_scc1 {l}",
                 f"s_lshl_b32 {s(S_T2)}, {s(S_J)}, 8", f"s_lshl_b32 {s(S_T3)}, {s(S_I)}, 2",
                 f"s_add_u32 {s(S_T2)}, {s(S_T2)}, {s(S_T3)}", f"s_add_u32 {s(S_T2)}, {s(S_T2)}, {5 * 4096}",
                 f"s_add_u32 {s(S_T3)}, {s(S_FLAG)}, {4 * 4096}",
                 f"v_mov_b32 {v(TMP)}, {s(S_NONCE)}", f"v_mov_b32 {v(TMP + 1)}, {s(S_T2)}",
                 f"v_writelane_b32 {v(TMP + 1)}, {s(S_T3)}, 0",
                 "s_mov_b64 exec, 3",
                 f"buffer_store_dword {v(TMP)}, {v(TMP + 1)}, {s(SRD_WS, 4)}, 0 offen sc1",
                 "s_mov_b64 exec, -1", f"{l}:"]]

    def poll_text(self, vdst, vaddr, off):
        return f"buffer_load_dword {v(vdst)}, {v(vaddr)}, {s(SRD_WS, 4)}, {off} offen sc1"

    def poll_issue(self, vdst, vaddr, off, tag):
        return Op(self.poll_text(vdst, vaddr, off), vm=tag)

    def poll_check(self, vdst, vaddr, off, tag):
        spin, back = self.lab("spin"), self.lab("back")
        self.tail += [f"{spin}:", f"s_mov_b32 {s(S_SPIN)}, 0", f"{spin}_l:",
                      self.poll_text(vdst, vaddr, off),
                      f"s_add_u32 {s(S_SPIN)}, {s(S_SPIN)}, 1",
                      f"s_cmp_gt_u32 {s(S_SPIN)}, 0x4000", f"s_cbranch_scc1 {spin}_x",
                      "s_waitcnt vmcnt(0)",
                      f"v_cmp_ne_u32 vcc, {s(S_NONCE)}, {v(vdst)}", "s_nop 1",
                      "s_cmp_lg_u64 vcc, 0", f"s_cbranch_scc1 {spin}_l",
                      f"{spin}_x:", "s_waitcnt vmcnt(0)", f"s_branch {back}"]
        return [[Op(f"v_cmp_ne_u32 vcc, {s(S_NONCE)}, {v(vdst)}", nvm=tag),
                 "s_cmp_lg_u64 vcc, 0", f"s_cbranch_scc1 {spin}", f"{back}:"]]

    def barrier(self, nvm=(), nlg=()):
        return Op("s_barrier", nvm=nvm, nlg=nlg)

    def prologue(self, a):
        c = self.cfg
        a("s_cmp_ge_u32 s2, 256\ns_cbranch_scc1 L_end")
        if c.prof:
            a(f"s_memtime {s(S_PROF, 2)}")
            a(f"s_memrealtime {s(S_PROF + 14, 2)}")
        for srd, off in ((SRD_X, 0), (SRD_Q, 8), (SRD_W1, 32), (SRD_W3, 40), (SRD_WS, 72), (SRD_W2, 48), (SRD_WO, 16), (SRD_OUT, 56)):
            a(f"s_load_dwordx2 {s(srd, 2)}, s[0:1], {off}")
        a(f"""
        v_lshrrev_b32 {v(TMP)}, 6, v0
        v_and_b32 {v(V_LANE)}, 63, v0
        v_readfirstlane_b32 {s(S_W)}, {v(TMP)}
        """)
        self.code_prefetch(a)
        if c.map1 == "4x8":
            a(f"""
            s_and_b32 {s(S_I)}, s2, 3
            s_lshl_b32 {s(S_I)}, {s(S_I)}, 2
            s_bfe_u32 {s(S_T0)}, s2, 0x20003
            s_add_u32 {s(S_I)}, {s(S_I)}, {s(S_T0)}
            s_bfe_u32 {s(S_J)}, s2, 0x10002
            s_lshl_b32 {s(S_J)}, {s(S_J)}, 3
            s_lshr_b32 {s(S_T0)}, s2, 5
            s_add_u32 {s(S_J)}, {s(S_J)}, {s(S_T0)}
            """)
        elif c.map1 == "8x4":
            a(f"""
            s_and_b32 {s(S_I)}, s2, 1
            s_lshl_b32 {s(S_I)}, {s(S_I)}, 3
            s_bfe_u32 {s(S_T0)}, s2, 0x30003
            s_add_u32 {s(S_I)}, {s(S_I)}, {s(S_T0)}
            s_bfe_u32 {s(S_J)}, s2, 0x20001
            s_lshl_b32 {s(S_J)}, {s(S_J)}, 2
            s_lshr_b32 {s(S_T0)}, s2, 6
            s_add_u32 {s(S_J)}, {s(S_J)}, {s(S_T0)}
            """)
        else:
            a(f"""
            s_and_b32 {s(S_I)}, s2, 7
            s_lshl_b32 {s(S_I)}, {s(S_I)}, 1
            s_bfe_u32 {s(S_T0)}, s2, 0x10003
            s_add_u32 {s(S_I)}, {s(S_I)}, {s(S_T0)}
            s_lshr_b32 {s(S_J)}, s2, 4
            """)
        r8, c8, t2, t3, t4, ve = TMP, TMP + 1, TMP + 2, TMP + 3, TMP + 4, TMP + 5
        for srd, nrec in ((SRD_X, 2048 * 896), (SRD_Q, 448 * 2688), (SRD_W1, 448 * 3584), (SRD_W3, 448 * 3584)):
            a(f"s_mov_b32 {s(srd + 2)}, {nrec}\ns_mov_b32 {s(srd + 3)}, 0x20000")
        a(f"""
        s_lshl_b32 {s(S_LDSW)}, {s(S_W)}, 10
        s_mul_i32 {s(S_X0)}, {s(S_I)}, {128 * 896}
        s_add_u32 {s(S_X1)}, {s(S_X0)}, {64 * 896}
        s_mul_i32 {s(S_T0)}, {s(S_J)}, 3
        s_sub_u32 {s(S_T0)}, {s(S_T0)}, 24
        s_lshl_b32 {s(S_T2)}, {s(S_J)}, 7
        s_cmp_ge_u32 {s(S_J)}, 12
        s_cselect_b32 {s(S_QC[0])}, {s(S_T0)}, {s(S_J)}
        s_mul_i32 {s(S_LOFF[0])}, {s(S_QC[0])}, 112
        s_cselect_b32 {s(S_LOFF[1])}, {s(S_LOFF[0])}, {s(S_T2)}
        s_cselect_b32 {s(S_T1)}, 112, 0
        s_cselect_b32 {s(SRD_L1 + 2)}, {s(SRD_Q + 2)}, {s(SRD_W1 + 2)}
        s_cselect_b32 {s(SRD_L2 + 2)}, {s(SRD_Q + 2)}, {s(SRD_W1 + 2)}
        s_mov_b32 {s(S_STEP12)}, {64 * 3584}
        s_cselect_b32 {s(S_STEP12)}, {64 * 2688}, {s(S_STEP12)}
        s_cselect_b64 vcc, -1, 0
        s_add_u32 {s(S_LOFF[1])}, {s(S_LOFF[1])}, {s(S_T1)}
        s_add_u32 {s(S_LOFF[2])}, {s(S_LOFF[1])}, {s(S_T1)}
        s_add_u32 {s(S_LOFF[3])}, {s(S_T2)}, {12 * 128}
        s_mov_b32 {s(S_LOFF[4])}, {s(S_LOFF[3])}
        s_mov_b32 {s(SRD_L1 + 3)}, 0x20000
        s_mov_b32 {s(SRD_L2 + 3)}, 0x20000
        s_mov_b32 {s(SRD_E + 3)}, 0x20000
        """)
        a(f"""
        v_lshrrev_b32 {v(r8)}, 3, {v(V_LANE)}
        v_and_b32 {v(c8)}, 7, {v(V_LANE)}
        s_lshl_b32 {s(S_T0)}, {s(S_W)}, 3
        v_lshlrev_b32 {v(t2)}, 1, {v(r8)}
        v_and_b32 {v(t2)}, 4, {v(t2)}
        v_xor_b32 {v(t2)}, {v(t2)}, {v(c8)}
        v_add_u32 {v(t3)}, {s(S_T0)}, {v(r8)}
        v_lshrrev_b32 {v(t4)}, 2, {v(t2)}
        v_sub_u32 {v(t4)}, {v(t2)}, {v(t4)}
        v_mul_u32_u24 {v(V_WQ)}, 2688, {v(t3)}
        v_mul_u32_u24 {v(V_WF)}, 3584, {v(t3)}
        v_mul_u32_u24 {v(V_W2)}, 896, {v(t3)}
        v_lshl_add_u32 {v(V_WQ)}, {v(t4)}, 4, {v(V_WQ)}
        v_lshl_add_u32 {v(V_WF)}, {v(t2)}, 4, {v(V_WF)}
        v_bfe_u32 {v(t4)}, {v(t3)}, 1, 3
        v_xor_b32 {v(t4)}, {v(t4)}, {v(c8)}
        v_lshl_add_u32 {v(V_XD)}, {v(t4)}, 4, {v(V_W2)}
        v_lshl_add_u32 {v(V_W2)}, {v(t2)}, 4, {v(V_W2)}
        v_cndmask_b32 {v(V_WL)}, {v(V_WF)}, {v(V_WQ)}, vcc
        """)
        a(f"""
        s_cmp_ge_u32 {s(S_J)}, 12
        s_cselect_b32 {s(S_T0)}, 3, 1
        s_cmp_lt_u32 {s(S_W)}, {s(S_T0)}
        s_cselect_b32 {s(S_T3)}, 1, 0
        s_cselect_b32 {s(SRD_E + 2)}, {s(SRD_Q + 2)}, {s(SRD_W1 + 2)}
        s_movk_i32 {s(S_T1)}, 3584
        s_cselect_b32 {s(S_T1)}, 2688, {s(S_T1)}
        s_cmp_eq_u32 {s(S_W)}, 1
        s_cselect_b32 {s(S_T2)}, {s(S_LOFF[1])}, {s(S_LOFF[0])}
        s_cmp_eq_u32 {s(S_W)}, 2
        s_cselect_b32 {s(S_T2)}, {s(S_LOFF[2])}, {s(S_T2)}
        s_cmp_ge_u32 {s(S_W)}, 3
        s_cselect_b32 {s(S_T2)}, {s(S_LOFF[3])}, {s(S_T2)}
        s_mul_i32 {s(S_ESTEP)}, {s(S_T1)}, 7
        s_mul_i32 {s(S_EST)}, {s(S_ESTEP)}, {s(S_I)}
        s_lshl_b32 {s(S_EST)}, {s(S_EST)}, 2
        s_add_u32 {s(S_EST)}, {s(S_EST)}, {s(S_T2)}
        s_lshl_b32 {s(S_T0)}, {s(S_I)}, 4
        s_add_u32 {s(S_T0)}, {s(S_T0)}, {s(S_J)}
        s_mul_i32 {s(S_T2)}, {s(S_T0)}, {8 * 896}
        s_cmp_eq_u32 {s(S_W)}, 5
        s_cselect_b32 {s(S_EST)}, {s(S_T2)}, {s(S_EST)}
        s_cselect_b32 {s(S_T1)}, 896, {s(S_T1)}
        s_cselect_b32 {s(S_T2)}, 8, 7
        v_lshrrev_b32 {v(t2)}, 2, {v(c8)}
        v_and_b32 {v(t2)}, {s(S_T3)}, {v(t2)}
        v_sub_u32 {v(t2)}, {v(c8)}, {v(t2)}
        v_mul_u32_u24 {v(ve)}, {s(S_T1)}, {v(r8)}
        v_lshl_add_u32 {v(ve)}, {v(t2)}, 4, {v(ve)}
        v_cmp_gt_u32 vcc, {s(S_T2)}, {v(r8)}
        v_mov_b32 {v(t2)}, 0x7ff00000
        v_cndmask_b32 {v(ve)}, {v(t2)}, {v(ve)}, vcc
        s_waitcnt lgkmcnt(0)
        s_load_dword {s(S_NONCE)}, {s(SRD_WS, 2)}, {EPOCH}
        """)
        a(self.stamp("karg"))
        for srd in (SRD_X, SRD_Q, SRD_W1, SRD_W3):
            a(f"s_and_b32 {s(srd + 1)}, {s(srd + 1)}, 0xffff")
        a(f"""
        s_bitcmp1_b32 {s(S_W)}, 0
        s_cselect_b64 {s(SRD_E, 2)}, {s(SRD_W1, 2)}, {s(SRD_W3, 2)}
        s_cmp_eq_u32 {s(S_T3)}, 1
        s_cselect_b64 {s(SRD_E, 2)}, {s(SRD_Q, 2)}, {s(SRD_E, 2)}
        s_cmp_gt_u32 {s(S_W)}, 5
        s_cbranch_scc1 L_eld_done
        s_cmp_eq_u32 {s(S_W)}, 5
        s_cbranch_scc1 L_eld_row
        """)
        for q in range(4):
            if q:
                a(f"s_add_u32 {s(S_EST)}, {s(S_EST)}, {s(S_ESTEP)}")
            a(f"buffer_load_dwordx4 {v(ACC + 4 * q, 4)}, {v(ve)}, {s(SRD_E, 4)}, {s(S_EST)} offen")
        a("s_branch L_eld_done\nL_eld_row:")
        for q in range(7):
            a(f"buffer_load_dwordx4 {v(ACC + 4 * q, 4)}, {v(ve)}, {s(SRD_X, 4)}, {s(S_EST)} offen offset:{128 * q}")
        a(f"""
        L_eld_done:
        s_cmp_ge_u32 {s(S_J)}, 12
        s_cselect_b64 {s(SRD_L1, 2)}, {s(SRD_Q, 2)}, {s(SRD_W1, 2)}
        s_cselect_b64 {s(SRD_L2, 2)}, {s(SRD_Q, 2)}, {s(SRD_W3, 2)}
        """)
        init, self.plan = self.g1_dma_plan()
        a(self.stamp("eld"))
        for d in init[:c.n_pre]:
            a(d)
        a(self.stamp("dma"))
        self.setup_rest(a, r8, c8)
        a(self.stamp("setup"))
        self.prework(a, r8, c8)
        a(self.stamp("edone"))
        for d in init[c.n_pre:]:
            a(d)

    def code_prefetch(self, a):
        c = self.cfg
        if not c.pf:
            return
        off, ad = XF + 104, XF + 106
        a(f"s_getpc_b64 {s(S_T0, 2)}\nL_pc:")
        if c.pf == 1:
            a(f"v_lshlrev_b32 {v(off)}, 7, v0")
        else:
            a(f"""
            s_bfe_u32 {s(S_T2)}, s2, 0x20003
            s_add_u32 {s(S_T2)}, {s(S_T2)}, 1
            s_cmp_eq_u32 {s(S_W)}, 7
            s_cselect_b32 {s(S_T2)}, 0, {s(S_T2)}
            s_cmp_ge_u32 {s(S_W)}, 6
            s_cselect_b32 {s(S_T2)}, {s(S_T2)}, 8
            s_lshl_b32 {s(S_T2)}, {s(S_T2)}, 13
            v_lshl_add_u32 {v(off)}, {v(V_LANE)}, 7, {s(S_T2)}
            """)
        a(f"""
        v_mov_b32 {v(ad + 1)}, {s(S_T1)}
        v_add_co_u32 {v(ad)}, vcc, {s(S_T0)}, {v(off)}
        v_addc_co_u32 {v(ad + 1)}, vcc, 0, {v(ad + 1)}, vcc
        v_cmp_gt_u32 vcc, L_code_end-L_pc, {v(off)}
        s_and_saveexec_b64 {s(S_T2, 2)}, vcc
        s_cbranch_execz L_nopf
        global_load_dword {v(off)}, {v(ad, 2)}, off
        L_nopf:
        s_mov_b64 exec, -1
        """)

    def setup_rest(self, a, r8, c8):
        for srd, nrec in ((SRD_WS, WS_RECORDS), (SRD_W2, 1792 * 896), (SRD_WO, 448 * 896), (SRD_OUT, 2048 * 896)):
            a(f"s_and_b32 {s(srd + 1)}, {s(srd + 1)}, 0xffff\ns_mov_b32 {s(srd + 2)}, {nrec}\ns_mov_b32 {s(srd + 3)}, 0x20000")
        cw, rb = S_T0, S_T1
        a(f"""
        s_lshr_b32 {s(cw)}, {s(S_W)}, 2
        s_and_b32 {s(rb)}, {s(S_W)}, 3
        s_cmp_eq_u32 {s(cw)}, 0
        s_mov_b32 {s(S_MA)}, 0
        s_cselect_b32 {s(S_MA + 1)}, -1, 0
        s_cselect_b32 {s(S_MB)}, 0, -1
        s_mov_b32 {s(S_MB + 1)}, 0
        s_lshl_b32 {s(S_T2)}, {s(S_I)}, 2
        s_add_u32 {s(S_T2)}, {s(S_T2)}, {s(rb)}
        s_lshl_b32 {s(S_STAT)}, {s(S_T2)}, 9
        s_add_u32 {s(S_STAT)}, {s(S_STAT)}, {STAT}
        s_mul_i32 {s(S_HA)}, {s(S_T2)}, {H_TB}
        s_mul_i32 {s(S_QST[0])}, {s(S_T2)}, {QKV_TB}
        s_mul_i32 {s(S_T2)}, {s(cw)}, {2 * 28672}
        s_add_u32 {s(S_HA)}, {s(S_HA)}, {s(S_T2)}
        s_lshl_b32 {s(S_T2)}, {s(S_J)}, 10
        s_add_u32 {s(S_HA)}, {s(S_HA)}, {s(S_T2)}
        s_add_u32 {s(S_HA)}, {s(S_HA)}, {HWS}
        s_lshl_b32 {s(S_T2)}, {s(cw)}, 11
        s_add_u32 {s(S_QST[0])}, {s(S_QST[0])}, {s(S_T2)}
        s_lshl_b32 {s(S_T2)}, {s(S_QC[0])}, 12
        s_add_u32 {s(S_QST[0])}, {s(S_QST[0])}, {s(S_T2)}
        s_add_u32 {s(S_QST[0])}, {s(S_QST[0])}, {QKV}
        s_add_u32 {s(S_QST[1])}, {s(S_QST[0])}, 4096
        s_add_u32 {s(S_QST[2])}, {s(S_QST[0])}, 8192
        s_add_u32 {s(S_QC[1])}, {s(S_QC[0])}, 1
        s_add_u32 {s(S_QC[2])}, {s(S_QC[0])}, 2
        """)
        for k in range(3):
            a(f"s_bitcmp1_b32 {s(S_QC[k])}, 3\ns_cselect_b32 {s(S_QC[k])}, 0, 0x3f80")
        a(f"""
        s_lshl_b32 {s(S_FLAG)}, {s(S_I)}, 8
        s_lshl_b32 {s(S_T2)}, {s(S_J)}, 2
        s_add_u32 {s(S_FLAG)}, {s(S_FLAG)}, {s(S_T2)}
        s_lshl_b32 {s(S_CS[0])}, {s(S_J)}, 14
        s_add_u32 {s(S_CS[0])}, {s(S_CS[0])}, {s(S_LDSW)}
        s_add_u32 {s(S_CS[0])}, {s(S_CS[0])}, {CS}
        s_add_u32 {s(S_CS[1])}, {s(S_CS[0])}, 8192
        s_cmp_lt_u32 {s(S_W)}, 2
        s_cselect_b32 {s(S_CS[1])}, {s(S_CS[1])}, {WS_RECORDS}
        s_and_b32 {s(S_T2)}, s2, 7
        s_lshr_b32 {s(S_T3)}, s2, 3
        s_lshl_b32 {s(S_AH)}, {s(S_T2)}, 1
        s_lshl_b32 {s(S_GM)}, {s(S_T2)}, 2
        s_and_b32 {s(S_T2)}, {s(S_T3)}, 1
        s_add_u32 {s(S_AH)}, {s(S_AH)}, {s(S_T2)}
        s_lshr_b32 {s(S_AI)}, {s(S_T3)}, 1
        s_and_b32 {s(S_T2)}, {s(S_T3)}, 3
        s_add_u32 {s(S_GM)}, {s(S_GM)}, {s(S_T2)}
        s_lshr_b32 {s(S_GN)}, {s(S_T3)}, 2
        s_lshl_b32 {s(S_BOFF)}, {s(S_GN)}, 7
        s_mov_b32 {s(S_WOFF)}, {s(S_BOFF)}
        s_cmp_eq_u32 {s(S_GN)}, 7
        s_cselect_b32 {s(SRD_W2 + 2)}, 0, {s(SRD_W2 + 2)}
        """)
        l31, hh, t2, t3 = TMP + 2, TMP + 3, TMP + 4, TMP + 6
        a(f"""
        v_and_b32 {v(l31)}, 31, {v(V_LANE)}
        v_lshrrev_b32 {v(hh)}, 5, {v(V_LANE)}
        v_bfe_u32 {v(t2)}, {v(V_LANE)}, 1, 3
        v_xor_b32 {v(t2)}, {v(t2)}, {v(hh)}
        v_lshlrev_b32 {v(t2)}, 4, {v(t2)}
        v_lshl_add_u32 {v(t2)}, {v(l31)}, 7, {v(t2)}
        s_lshl_b32 {s(S_T2)}, {s(rb)}, 12
        v_add_u32 {v(V_XR[0])}, {s(S_T2)}, {v(t2)}
        v_xor_b32 {v(V_XR[1])}, 32, {v(V_XR[0])}
        v_xor_b32 {v(V_XR[2])}, 64, {v(V_XR[0])}
        v_xor_b32 {v(V_XR[3])}, 0x60, {v(V_XR[0])}
        v_bfe_u32 {v(t2)}, {v(V_LANE)}, 2, 2
        v_lshl_add_u32 {v(t3)}, {v(hh)}, 3, {v(t2)}
        v_lshlrev_b32 {v(t3)}, 7, {v(t3)}
        v_lshrrev_b32 {v(t2)}, 1, {v(t2)}
        v_xor_b32 {v(t2)}, {s(cw)}, {v(t2)}
        v_lshl_add_u32 {v(t3)}, {v(t2)}, 6, {v(t3)}
        v_bfe_u32 {v(hh)}, {v(V_LANE)}, 4, 1
        v_lshl_add_u32 {v(t3)}, {v(hh)}, 5, {v(t3)}
        v_and_b32 {v(t2)}, 3, {v(V_LANE)}
        v_lshl_add_u32 {v(V_WA[0])}, {v(t2)}, 3, {v(t3)}
        v_add_u32 {v(V_WA[1])}, 0x10000, {v(V_WA[0])}
        v_add_u32 {v(V_WA[2])}, 0x20000, {v(V_WA[0])}
        v_lshlrev_b32 {v(V_L16)}, 4, {v(V_LANE)}
        v_add_u32 {v(V_H2)}, 28672, {v(V_L16)}
        s_lshl_b32 {s(S_T2)}, {s(S_I)}, 8
        s_lshl_b32 {s(S_T3)}, {s(S_J)}, 8
        s_add_u32 {s(S_T2)}, {s(S_T2)}, {4 * 4096}
        s_add_u32 {s(S_T3)}, {s(S_T3)}, {5 * 4096}
        s_sub_u32 {s(S_T3)}, {s(S_T3)}, {s(S_T2)}
        v_and_b32 {v(t2)}, 15, {v(V_LANE)}
        v_mul_lo_u32 {v(hh)}, {v(hh)}, {s(S_T3)}
        v_lshl_add_u32 {v(V_POLL)}, {v(t2)}, 2, {v(hh)}
        v_add_u32 {v(V_POLL)}, {s(S_T2)}, {v(V_POLL)}
        """)

    def prework(self, a, r8, c8):
        n = self.cfg.n_pre
        A = [TMP + 8 + e for e in range(8)]
        val, adr = TMP + 16, TMP + 17
        a(f"""
        s_mov_b32 {s(S_EST)}, {WS_RECORDS}
        s_cmp_gt_u32 {s(S_W)}, 5
        s_cbranch_scc1 L_e_none
        s_cmp_eq_u32 {s(S_W)}, 5
        s_cbranch_scc1 L_e_row
        s_movk_i32 {s(S_T0)}, 0x3f80
        s_mov_b32 {s(S_T1)}, 0x3f800000
        s_lshl_b32 {s(S_EST)}, {s(S_J)}, 14
        s_lshl_b32 {s(S_T2)}, {s(S_W)}, 11
        s_add_u32 {s(S_EST)}, {s(S_EST)}, {s(S_T2)}
        s_lshl_b32 {s(S_T2)}, {s(S_I)}, 7
        s_add_u32 {s(S_EST)}, {s(S_EST)}, {s(S_T2)}
        s_add_u32 {s(S_EST)}, {s(S_EST)}, {CS}
        s_bfe_u32 {s(S_T2)}, {s(S_I)}, 0x10001
        s_lshl_b32 {s(S_T2)}, {s(S_T2)}, 6
        v_lshrrev_b32 {v(val)}, 4, {v(V_LANE)}
        v_lshlrev_b32 {v(val)}, 2, {v(val)}
        v_lshl_add_u32 {v(adr)}, {v(c8)}, 4, {v(val)}
        v_xor_b32 {v(adr)}, {s(S_T2)}, {v(adr)}
        """)
        for e in range(8):
            a(f"v_mov_b32 {v(A[e])}, 0")
        for q in range(4):
            a(f"s_waitcnt vmcnt({n + 3 - q})")
            for k in range(4):
                a(f"v_dot2c_f32_bf16 {v(A[2 * k])}, {s(S_T0)}, {v(ACC + 4 * q + k)}")
                a(f"v_dot2c_f32_bf16 {v(A[2 * k + 1])}, {s(S_T1)}, {v(ACC + 4 * q + k)}")
        for e in range(4):
            a(f"v_permlane32_swap_b32 {v(A[e])}, {v(A[e + 4])}")
        for e in range(4):
            a(f"v_add_f32 {v(A[e])}, {v(A[e])}, {v(A[e + 4])}")
        for e in range(2):
            a(f"v_permlane16_swap_b32 {v(A[e])}, {v(A[e + 2])}")
        for e in range(2):
            a(f"v_add_f32 {v(A[e])}, {v(A[e])}, {v(A[e + 2])}")
        for e in range(2):
            a(f"v_add_f32_dpp {v(A[e])}, {v(A[e])}, {v(A[e])} row_ror:8 row_mask:0xf bank_mask:0xf")
        a(f"""
        v_cvt_pk_bf16_f32 {v(val)}, {v(A[0])}, {v(A[1])}
        s_branch L_e_done
        L_e_row:
        s_mov_b32 {s(S_T0)}, 0x3f803f80
        s_lshl_b32 {s(S_EST)}, {s(S_I)}, 4
        s_add_u32 {s(S_EST)}, {s(S_EST)}, {s(S_J)}
        s_lshl_b32 {s(S_EST)}, {s(S_EST)}, 7
        s_add_u32 {s(S_EST)}, {s(S_EST)}, {STAT}
        v_and_b32 {v(val)}, 3, {v(c8)}
        v_lshlrev_b32 {v(adr)}, 4, {v(r8)}
        v_lshl_add_u32 {v(adr)}, {v(val)}, 2, {v(adr)}
        """)
        for e in range(4):
            a(f"v_mov_b32 {v(A[e])}, 0")
        for q in range(7):
            a(f"s_waitcnt vmcnt({n + 6 - q})")
            for k in range(4):
                x = ACC + 4 * q + k
                a(f"v_dot2c_f32_bf16 {v(A[2 * (k & 1)])}, {s(S_T0)}, {v(x)}")
                a(f"v_dot2c_f32_bf16 {v(A[2 * (k & 1) + 1])}, {v(x)}, {v(x)}")
        a(f"v_add_f32 {v(A[0])}, {v(A[0])}, {v(A[2])}\nv_add_f32 {v(A[1])}, {v(A[1])}, {v(A[3])}")
        for pat in ("quad_perm:[1,0,3,2]", "quad_perm:[2,3,0,1]", "row_half_mirror"):
            for e in range(2):
                a(f"v_add_f32_dpp {v(A[e])}, {v(A[e])}, {v(A[e])} {pat} row_mask:0xf bank_mask:0xf")
        inv = 0x3B124925
        a(f"""
        v_mul_f32 {v(A[0])}, {inv}, {v(A[0])}
        v_mul_f32 {v(A[1])}, {inv}, {v(A[1])}
        v_fma_f32 {v(A[1])}, -{v(A[0])}, {v(A[0])}, {v(A[1])}
        v_max_f32 {v(A[1])}, 0, {v(A[1])}
        v_add_f32 {v(A[1])}, 0x3727c5ac, {v(A[1])}
        v_rsq_f32 {v(A[2])}, {v(A[1])}
        v_cvt_pk_bf16_f32 {v(A[0])}, -{v(A[0])}, -{v(A[0])}
        v_cmp_eq_u32 vcc, 2, {v(val)}
        v_mul_f32 {v(A[3])}, 0xbfb8aa3b, {v(A[2])}
        v_cndmask_b32 {v(A[1])}, {v(A[1])}, {v(A[3])}, vcc
        v_cmp_eq_u32 vcc, 1, {v(val)}
        v_cndmask_b32 {v(A[1])}, {v(A[1])}, {v(A[2])}, vcc
        v_cmp_eq_u32 vcc, 0, {v(val)}
        v_cndmask_b32 {v(val)}, {v(A[1])}, {v(A[0])}, vcc
        s_branch L_e_done
        L_e_none:
        v_mov_b32 {v(adr)}, 0
        s_or_b32 {s(S_T0)}, {s(S_I)}, {s(S_J)}
        s_cmp_lg_u32 {s(S_T0)}, 0
        s_cbranch_scc1 L_e_done
        s_and_b32 {s(S_T0)}, {s(S_W)}, 1
        s_lshl_b32 {s(S_T1)}, {s(S_T0)}, 11
        s_add_u32 {s(S_T1)}, {s(S_T1)}, {POISON}
        s_cmp_eq_u32 {s(S_T0)}, 0
        s_cselect_b32 {s(S_T2)}, 0, 0xf149
        s_cselect_b32 {s(S_T3)}, 0xf149, 0
        v_cmp_gt_u32 vcc, 32, {v(V_LANE)}
        v_mov_b32 {v(A[0])}, {s(S_T2)}
        v_mov_b32 {v(A[6])}, {s(S_T3)}
        v_cndmask_b32 {v(A[0])}, 0, {v(A[0])}, vcc
        v_cndmask_b32 {v(A[6])}, {v(A[6])}, 0, vcc
        """)
        for e in (1, 2, 3, 4, 5, 7):
            a(f"v_mov_b32 {v(A[e])}, 0")
        a(f"""
        buffer_store_dwordx4 {v(A[0], 4)}, {v(V_L16)}, {s(SRD_WS, 4)}, {s(S_T1)} offen sc1
        buffer_store_dwordx4 {v(A[4], 4)}, {v(V_L16)}, {s(SRD_WS, 4)}, {s(S_T1)} offen offset:1024 sc1
        L_e_done:
        s_nop 1
        """)
        a(Op(f"buffer_store_dword {v(val)}, {v(adr)}, {s(SRD_WS, 4)}, {s(S_EST)} offen sc1", vm="E"))

    SEQ = ([(3 * g + L, k) for g in range(7) for k in range(4) for L in range(3)] + [(None, L) for L in range(5)] +
           [(21 + 2 * g + L, k) for g in range(7) for k in range(4) for L in range(2)])
    NB = [12 * g + 9 for g in range(7)] + [89 + 8 * g + 5 for g in range(7)]

    def g1_wread(self, n):
        u, k = self.SEQ[n]
        slot = 6 if u is None else self.W_SLOT[u]
        off = (slot & 7) * 8192 + k * 2048
        d = WF + 4 * (n & 3)
        return [Op(f"ds_read_b64_tr_b16 {v(d, 2)}, {v(V_WA[slot >> 3])} offset:{off}", lg=f"w{n}a"),
                Op(f"ds_read_b64_tr_b16 {v(d + 2, 2)}, {v(V_WA[slot >> 3])} offset:{off + 512}", lg=f"w{n}")]

    def g1_mfma(self, n):
        u, k = self.SEQ[n]
        if u is None:
            L, b, c, tags = k, V_MU, ("0" if k >= 3 else v(acc(k), 16)), (f"w{n}",)
        else:
            L, g = self.W_UNITS[u]
            b, c, tags = XF + 16 * g + 4 * k, ("0" if (u < 3 and k == 0) else v(acc(L), 16)), (f"w{n}", f"xf{g}{k}")
        return Op(f"v_mfma_f32_32x32x16_bf16 {v(acc(L), 16)}, {v(WF + 4 * (n & 3), 4)}, {v(b, 4)}, {c}", nlg=tags)

    def xf_read(self, g, k):
        return Op(f"ds_read_b128 {v(XF + 16 * g + 4 * k, 4)}, {v(V_XR[k])} offset:{(g & 3) * 16384}", lg=f"xf{g}{k}")

    def g1_barrier(self, G, extra=()):
        if G < 6:
            need = [f"X{G + 1}0", f"X{G + 1}1"] + [f"W{u}" for u in range(3 * G + 3, 3 * G + 6)]
        elif G == 6:
            need = ["A0", "A1", "W21", "W22"]
        else:
            need = [f"W{u}" for u in (9 + 2 * G, 10 + 2 * G) if u < 35]
        return self.barrier(nvm=need + list(extra))

    def g1_range(self, G):
        return range(self.NB[G - 1] if G else 0, self.NB[G])

    def g1_emit(self, a, rng, side, valu, bars):
        k = 0
        for idx, n in enumerate(rng):
            if n not in bars or n != rng[0] or n == 0:
                a(self.g1_mfma(n))
            if n + 3 < len(self.SEQ):
                a(self.g1_wread(n + 3))
            a(side.get(n, []))
            tgt = (len(valu) * (idx + 1) + len(rng) - 1) // len(rng)
            while k < tgt:
                a(valu[k]); k += 1

    @staticmethod
    def spread(side, rng, items, first=1):
        if not items:
            return
        span = len(rng) - first
        for q, it in enumerate(items):
            side.setdefault(rng[first + (q * span) // len(items)], []).append(it)

    def gemm1_pass1(self, a):
        c = self.cfg
        a(f"""
        s_waitcnt lgkmcnt(0)
        s_mul_i32 {s(S_NONCE)}, {s(S_NONCE)}, 0x41c64e6d
        s_add_u32 {s(S_NONCE)}, {s(S_NONCE)}, 0x3039
        """)
        a(self.barrier(nvm=("X00", "X01", "W0", "W1", "W2")))
        a(self.stamp("binit"))
        a(self.xf_read(0, 0))
        for n in range(3):
            a(self.g1_wread(n))
        for k in range(1, 4):
            a(self.xf_read(0, k))
        for G in range(8):
            rng = self.g1_range(G)
            if G == 7:
                rng = range(rng[0], 89)
            side, valu = {}, []
            if 1 <= G <= 6:
                for k in range(4):
                    side.setdefault(rng[(0, 1, 3, 5)[k]], []).append(self.xf_read(G, k))
            dm = list(self.plan[G]) if G < 7 else self.plan[7][:2]
            if G == c.sigp + 1:
                side.setdefault(rng[0], []).append(self.signal_pre())
            if G == c.pollp:
                side.setdefault(rng[0], []).append(self.poll_issue(TMP + 2, V_POLL, 0, "pp"))
            if G == c.pollp + 1:
                side.setdefault(rng[0], []).append(self.poll_check(TMP + 2, V_POLL, 0, "pp"))
                side[rng[0]].append([f"v_and_b32 {v(TMP + 3)}, 0x1f0, {v(V_L16)}",
                                     Op(f"buffer_load_dwordx4 {v(V_REC, 4)}, {v(TMP + 3)}, {s(SRD_WS, 4)}, {s(S_STAT)} offen sc1", vm="rec")])
                dm = [self.dma(6 + t, SRD_WS, V_L16, S_CS[t], f"A{t}", extra="sc1") for t in range(2)] + dm
            if G == 6:
                valu = self.late_scalars()
            if G == 7:
                side.setdefault(rng[0], []).append([Op(f"v_mov_b32 {v(V_MU + q)}, {v(V_REC)}", nvm="rec") for q in range(4)])
                valu = self.attn_addr()
            self.spread(side, rng, dm)
            self.g1_emit(a, rng, side, valu, self.NB)
            if G < 7:
                a(self.g1_mfma(self.NB[G]))
                a(self.g1_barrier(G, ["E"] if G == c.sigp else []))
                a(self.stamp(f"b{G}"))
        a(self.stamp("p1end"))

    def late_scalars(self):
        wh, wl = S_T0, S_T1
        t = f"""
        s_lshr_b32 {s(wh)}, {s(S_W)}, 1
        s_and_b32 {s(wl)}, {s(S_W)}, 1
        s_lshl_b32 {s(S_T2)}, {s(S_AI)}, 2
        s_add_u32 {s(S_T2)}, {s(S_T2)}, {s(wh)}
        s_mul_i32 {s(S_QOFF)}, {s(S_T2)}, {QKV_TB}
        s_lshl_b32 {s(S_OST)}, {s(S_T2)}, 15
        s_lshl_b32 {s(S_T2)}, {s(S_AH)}, 11
        s_add_u32 {s(S_QOFF)}, {s(S_QOFF)}, {s(S_T2)}
        s_add_u32 {s(S_QOFF)}, {s(S_QOFF)}, {QKV}
        s_lshl_b32 {s(S_T2)}, {s(wl)}, 10
        s_add_u32 {s(S_KOFF[2])}, {s(S_QOFF)}, {s(S_T2)}
        s_add_u32 {s(S_KOFF[2])}, {s(S_KOFF[2])}, {64 * 512}
        s_add_u32 {s(S_VOFF[2])}, {s(S_KOFF[2])}, {64 * 512}
        s_and_b32 {s(S_T3)}, {s(S_AH)}, 1
        s_lshl_b32 {s(S_T0)}, {s(S_T3)}, 11
        s_add_u32 {s(S_T2)}, {s(S_T2)}, {s(S_T0)}
        s_add_u32 {s(S_T2)}, {s(S_T2)}, {POISON}
        s_sub_u32 {s(S_KOFF[1])}, {s(S_KOFF[2])}, {4 * QKV_TB}
        s_sub_u32 {s(S_VOFF[1])}, {s(S_VOFF[2])}, {4 * QKV_TB}
        s_sub_u32 {s(S_KOFF[0])}, {s(S_KOFF[2])}, {8 * QKV_TB}
        s_sub_u32 {s(S_VOFF[0])}, {s(S_VOFF[2])}, {8 * QKV_TB}
        s_cmp_ge_u32 {s(S_AI)}, 1 | s_cselect_b32 {s(S_KOFF[1])}, {s(S_KOFF[1])}, {s(S_T2)} | s_cselect_b32 {s(S_VOFF[1])}, {s(S_VOFF[1])}, {s(S_T2)}
        s_cmp_ge_u32 {s(S_AI)}, 2 | s_cselect_b32 {s(S_KOFF[0])}, {s(S_KOFF[0])}, {s(S_T2)} | s_cselect_b32 {s(S_VOFF[0])}, {s(S_VOFF[0])}, {s(S_T2)}
        s_lshl_b32 {s(S_T2)}, {s(wl)}, 8
        s_add_u32 {s(S_QOFF)}, {s(S_QOFF)}, {s(S_T2)}
        s_add_u32 {s(S_OST)}, {s(S_OST)}, {s(S_T2)}
        s_lshl_b32 {s(S_T2)}, {s(S_T3)}, 14
        s_add_u32 {s(S_OST)}, {s(S_OST)}, {s(S_T2)}
        s_lshr_b32 {s(S_T2)}, {s(S_AH)}, 1
        s_lshl_b32 {s(S_T2)}, {s(S_T2)}, 10
        s_add_u32 {s(S_OST)}, {s(S_OST)}, {s(S_T2)}
        s_add_u32 {s(S_OST)}, {s(S_OST)}, {OWS}
        s_lshl_b32 {s(S_OFLAG)}, {s(S_AI)}, 8
        s_lshl_b32 {s(S_T2)}, {s(S_AH)}, 2
        s_add_u32 {s(S_OFLAG)}, {s(S_OFLAG)}, {s(S_T2)}
        s_add_u32 {s(S_OFLAG)}, {s(S_OFLAG)}, {3 * 4096}
        s_and_b32 {s(S_KQ)}, {s(S_W)}, 3
        s_lshr_b32 {s(S_T0)}, {s(S_W)}, 2
        s_lshl_b32 {s(S_T1)}, {s(S_GM)}, 1
        s_add_u32 {s(S_T1)}, {s(S_T1)}, {s(S_T0)}
        s_mul_i32 {s(S_HLD)}, {s(S_T1)}, {H_TB}
        s_mul_i32 {s(S_T2)}, {s(S_KQ)}, 28672
        s_add_u32 {s(S_HLD)}, {s(S_HLD)}, {s(S_T2)}
        s_add_u32 {s(S_HLD)}, {s(S_HLD)}, {HWS}
        s_lshl_b32 {s(S_OLD)}, {s(S_T1)}, 15
        s_lshl_b32 {s(S_T2)}, {s(S_KQ)}, 13
        s_add_u32 {s(S_OLD)}, {s(S_OLD)}, {s(S_T2)}
        s_add_u32 {s(S_OLD)}, {s(S_OLD)}, {OWS}
        s_mul_i32 {s(S_XOFF)}, {s(S_T1)}, {32 * 896}
        s_lshl_b32 {s(S_T2)}, {s(S_GN)}, 7
        s_add_u32 {s(S_XOFF)}, {s(S_XOFF)}, {s(S_T2)}
        s_lshl_b32 {s(S_T2)}, {s(S_KQ)}, 5
        s_add_u32 {s(S_XOFF)}, {s(S_XOFF)}, {s(S_T2)}
        """
        return [[x.strip() for x in l.split("|")] for l in t.strip().split("\n")]

    def attn_addr(self):
        g, l15, t0, t1, t2 = TMP + 4, TMP + 5, TMP + 6, TMP + 7, TMP + 8
        t = f"""
        v_lshrrev_b32 {v(g)}, 4, {v(V_LANE)}
        v_and_b32 {v(l15)}, 15, {v(V_LANE)}
        s_lshr_b32 {s(S_T0)}, {s(S_W)}, 1 | s_lshl_b32 {s(S_T0)}, {s(S_T0)}, 11 | s_and_b32 {s(S_T1)}, {s(S_W)}, 1 | s_lshl_b32 {s(S_T2)}, {s(S_T1)}, 8
        s_add_u32 {s(S_T0)}, {s(S_T0)}, {s(S_T2)} | s_add_u32 {s(S_T0)}, {s(S_T0)}, {14 * 8192} | s_mul_i32 {s(S_T1)}, {s(S_T1)}, 1536 | s_add_u32 {s(S_T1)}, {s(S_T1)}, 256
        v_lshlrev_b32 {v(t0)}, 4, {v(l15)}
        v_lshl_add_u32 {v(V_QLD)}, {v(g)}, 9, {v(t0)}
        v_add_u32 {v(V_KE)}, {s(S_T0)}, {v(V_QLD)}
        v_add_u32 {v(V_KO)}, {s(S_T1)}, {v(V_KE)}
        v_lshrrev_b32 {v(t1)}, 5, {v(V_LANE)}
        v_lshlrev_b32 {v(t2)}, 7, {v(t1)}
        v_xor_b32 {v(V_VD)}, {v(t2)}, {v(V_L16)}
        v_lshl_add_u32 {v(t0)}, {v(t1)}, 13, {v(t0)}
        v_and_b32 {v(t1)}, 1, {v(g)}
        v_lshl_add_u32 {v(V_OSTV)}, {v(t1)}, 9, {v(t0)}
        v_bfe_u32 {v(t0)}, {v(V_LANE)}, 1, 1
        v_lshrrev_b32 {v(t1)}, 2, {v(V_LANE)}
        v_lshlrev_b32 {v(t2)}, 3, {v(t0)}
        v_xor_b32 {v(t1)}, {v(t1)}, {v(t2)}
        v_lshlrev_b32 {v(t1)}, 4, {v(t1)}
        v_lshl_add_u32 {v(t1)}, {v(t0)}, 9, {v(t1)}
        v_and_b32 {v(t0)}, 1, {v(V_LANE)}
        v_lshl_add_u32 {v(t1)}, {v(t0)}, 3, {v(t1)}
        s_add_u32 {s(S_T0)}, {s(S_T0)}, {3 * 8192} | v_add_u32 {v(V_VE)}, {s(S_T0)}, {v(t1)}
        v_add_u32 {v(V_VO)}, {s(S_T1)}, {v(V_VE)}
        v_min_u32 {v(t0)}, 2, {v(g)}
        s_sub_u32 {s(S_T2)}, {s(S_AI)}, 2 | v_add_u32 {v(t0)}, {s(S_T2)}, {v(t0)}
        v_max_i32 {v(t0)}, 0, {v(t0)}
        v_lshlrev_b32 {v(t0)}, 8, {v(t0)}
        v_lshl_add_u32 {v(V_POLL)}, {v(l15)}, 2, {v(t0)}
        """
        return [[x.strip() for x in l.split("|")] for l in t.strip().split("\n")]

    def attn_masks(self):
        t0, t1 = XF + 4, XF + 5
        ops = [f"v_lshrrev_b32 {v(t0)}, 2, {v(V_LANE)}", f"v_and_b32 {v(t0)}, 12, {v(t0)}",
               f"v_and_b32 {v(t1)}, 15, {v(V_LANE)}", f"v_sub_u32 {v(t0)}, {v(t1)}, {v(t0)}",
               f"v_mov_b32 {v(t1)}, {NEG_BIG}"]
        for r in range(4):
            ops.append([f"v_cmp_gt_i32 vcc, {r}, {v(t0)}",
                        f"v_cndmask_b32 {v(sblk(0) + r)}, {v(t1)}, 0, vcc",
                        f"v_cndmask_b32 {v(sblk(16) + r)}, 0, {v(t1)}, vcc"])
        return ops

    def epi_qkv(self, L, k, tag):
        A = acc(L)
        P = TMP + 8 * (k & 1)
        vc = TMP + 16
        ops = [Op(f"v_mov_b32 {v(vc)}, {s(S_QC[k])}")]
        for q in range(8):
            ops.append(Op(f"v_mul_f32 {v(A + 2 * q)}, {v(V_REC + 1)}, {v(A + 2 * q)}"))
            ops.append(Op(f"v_mul_f32 {v(A + 2 * q + 1)}, {v(V_REC + 1)}, {v(A + 2 * q + 1)}"))
        for q in range(8):
            ops.append(Op(f"v_cvt_pk_bf16_f32 {v(P + q)}, {v(A + 2 * q)}, {v(A + 2 * q + 1)}"))
        ops += [Op(f"v_cndmask_b32 {v(P)}, {v(P)}, {v(vc)}, {s(S_MB, 2)}"),
                Op(f"v_cndmask_b32 {v(P + 1)}, {v(P + 1)}, 0, {s(S_MB, 2)}"),
                Op(f"v_cndmask_b32 {v(P + 6)}, {v(P + 6)}, {v(vc)}, {s(S_MA, 2)}"),
                Op(f"v_cndmask_b32 {v(P + 7)}, {v(P + 7)}, 0, {s(S_MA, 2)}")]
        for h2 in range(2):
            p = P + 4 * h2
            ops.append(Op(f"v_permlane32_swap_b32 {v(p)}, {v(p + 2)}"))
            ops.append(Op(f"v_permlane32_swap_b32 {v(p + 1)}, {v(p + 3)}"))
        for h2 in range(2):
            ops.append(Op(f"buffer_store_dwordx4 {v(P + 4 * h2, 4)}, {v(V_L16)}, {s(SRD_WS, 4)}, {s(S_QST[k])} offen offset:{1024 * h2} sc1",
                          vm=f"{tag}{h2}"))
        return ops

    def epi_h(self, Lg, Lu, tag):
        G, U = acc(Lg), acc(Lu)
        ops = []
        for b in range(4):
            e = TMP + 16 + 4 * (b & 1)
            out = TMP + 8 * (b >> 1)
            r = range(4 * b, 4 * b + 4)
            ops += [Op(f"v_mul_f32 {v(e + q)}, {v(V_REC + 2)}, {v(G + i)}") for q, i in enumerate(r)]
            ops += [Op(f"v_exp_f32 {v(e + q)}, {v(e + q)}") for q in range(4)]
            ops += [Op(f"v_mul_f32 {v(G + i)}, {v(G + i)}, {v(U + i)}") for i in r]
            ops += [Op(f"v_fma_f32 {v(e + q)}, {v(e + q)}, {v(V_REC + 3)}, {v(V_REC + 3)}") for q in range(4)]
            ops += [Op(f"v_rcp_f32 {v(e + q)}, {v(e + q)}") for q in range(4)]
            ops += [Op(f"v_mul_f32 {v(G + i)}, {v(G + i)}, {v(e + q)}") for q, i in enumerate(r)]
            o = out + 2 * (b & 1)
            ops += [Op(f"v_cvt_pk_bf16_f32 {v(o)}, {v(G + 4 * b)}, {v(G + 4 * b + 1)}"),
                    Op(f"v_cvt_pk_bf16_f32 {v(o + 1)}, {v(G + 4 * b + 2)}, {v(G + 4 * b + 3)}")]
            if b & 1:
                va = V_L16 if b == 1 else V_H2
                ops.append(Op(f"buffer_store_dwordx4 {v(out, 4)}, {v(va)}, {s(SRD_WS, 4)}, {s(S_HA)} offen sc1", vm=f"{tag}{b >> 1}"))
        return ops

    def gemm1_pass2(self, a, typec):
        c = self.cfg
        if typec:
            epi = self.epi_qkv(0, 0, "q") + self.epi_qkv(1, 1, "q") + self.epi_qkv(2, 2, "q") + self.attn_masks()
            n = len(epi) - 9
            cut = [0, 30, 75, n, n, len(epi), len(epi), len(epi), len(epi)]
        else:
            epi = self.epi_qkv(0, 0, "q") + self.epi_h(1, 2, "ha") + self.attn_masks()
            cut = [0, 18, 40, 62, 84, 106, 128, len(epi) - 3, len(epi)]
        for G in range(7, 15):
            lo = 89 if G == 7 else self.NB[G - 1]
            hi = self.NB[G] if G < 14 else len(self.SEQ)
            rng = range(lo, hi)
            side = {}
            dm = self.plan[7][2:] if G == 7 else (self.plan[G] if G < 14 else [])
            valu = epi[cut[G - 7]:cut[G - 6]]
            if G == 7:
                valu = [[]] * 2 + valu
            if G == c.sig0 + 1:
                side.setdefault(rng[0], []).append(self.signal_g1(0, XF + 1))
            if G == c.poll0:
                side.setdefault(rng[0], []).append(self.poll_issue(XF, V_POLL, 0, "p0"))
            self.spread(side, rng, dm, 0 if G == 7 else 1)
            self.g1_emit(a, rng, side, valu, self.NB)
            if G < 14:
                a(self.g1_mfma(self.NB[G]))
                a(self.g1_barrier(G, ["q1"] if G == c.sig0 else []))
                a(self.stamp(f"b{G}"))

    def h_load(self, gr):
        ops = []
        if gr and gr % 4 == 0:
            ops.append(Op(f"s_add_u32 {s(S_HLD)}, {s(S_HLD)}, 4096"))
        ops.append(Op(f"buffer_load_dwordx4 {v(XF + 4 * gr, 4)}, {v(V_L16)}, {s(SRD_WS, 4)}, {s(S_HLD)} offen offset:{1024 * (gr % 4)} sc1",
                      vm=f"h{gr}"))
        return ops

    def k_read(self, b):
        return Op(f"ds_read_b128 {v(WF + 4 * (b & 3), 4)}, {v(V_KO if b & 1 else V_KE)} offset:{(b >> 1) * 2048}", lg=f"k{b}")

    def v_read(self, m):
        p, dh = m >> 1, m & 1
        d = WF + 4 * (m & 3)
        ops = [Op(f"ds_read_b64_tr_b16 {v(d, 2)}, {v(V_VE)} offset:{p * 2048 + dh * 1024}", lg=f"v{m}" if p == 8 else f"v{m}a")]
        if p < 8:
            ops.append(Op(f"ds_read_b64_tr_b16 {v(d + 2, 2)}, {v(V_VO)} offset:{p * 2048 + dh * 1024}", lg=f"v{m}"))
        return ops

    def pv_mfma(self, m):
        p, dh = m >> 1, m & 1
        o = v(OACC + 4 * dh, 4)
        if p < 8:
            return Op(f"v_mfma_f32_16x16x32_bf16 {o}, {v(WF + 4 * (m & 3), 4)}, {v(sblk(2 * p), 4)}, {'0' if p == 0 else o}", nlg=f"v{m}")
        return Op(f"v_mfma_f32_16x16x16_bf16 {o}, {v(WF + 4 * (m & 3), 2)}, {v(S16, 2)}, {o}", nlg=f"v{m}")

    def attention_entry(self, a):
        a(self.stamp("p2end"))
        a(self.poll_check(XF, V_POLL, 0, "p0"))
        a(self.stamp("poll0"))
        l = self.lab("epoch")
        a(f"""
        s_or_b32 {s(S_T0)}, s2, {s(S_W)}
        s_cmp_lg_u32 {s(S_T0)}, 0
        s_cbranch_scc1 {l}
        v_mov_b32 {v(XF + 1)}, {s(S_NONCE)}
        s_mov_b32 {s(S_T0)}, {EPOCH}
        s_mov_b64 exec, 1
        buffer_store_dword {v(XF + 1)}, off, {s(SRD_WS, 4)}, {s(S_T0)} sc1
        s_mov_b64 exec, -1
        {l}:
        s_add_u32 {s(S_HA)}, {s(S_HA)}, {12 * 1024}
        """)
        req = [[Op(f"buffer_load_dwordx4 {v(V_Q, 4)}, {v(V_QLD)}, {s(SRD_WS, 4)}, {s(S_QOFF)} offen sc1", vm="Q")]]
        req += [self.dma(14 + t, SRD_WS, V_L16, S_KOFF[t], f"K{t}", extra="sc1") for t in range(3)]
        req += [self.dma(17 + t, SRD_WS, V_VD, S_VOFF[t], f"V{t}", extra="sc1") for t in range(3)]
        req += self.plan["rest"] + [self.bdma(10), self.bdma(11)]
        epi = self.epi_h(3, 4, "hb")
        a(req[:2])
        a(interleave([[o] for o in epi], req[2:], 0, 50))
        a(self.stamp("hbend"))
        a(f"""
        v_and_b32 {v(V_GP)}, 15, {v(V_LANE)}
        v_lshlrev_b32 {v(V_GP)}, 2, {v(V_GP)}
        s_lshr_b32 {s(S_T0)}, {s(S_GM)}, 1
        s_lshl_b32 {s(S_T0)}, {s(S_T0)}, 8
        s_add_u32 {s(S_T0)}, {s(S_T0)}, {2 * 4096}
        v_add_u32 {v(V_GP)}, {s(S_T0)}, {v(V_GP)}
        """)

    def attention(self, a):
        c = self.cfg
        a(self.barrier(nvm=("Q", "K0", "K1", "K2", "V0", "V1", "V2")))
        a(self.stamp("abar"))
        for b in range(3):
            a(self.k_read(b))
        late = [self.bdma(12), self.bdma(13)]
        for b in range(17):
            cin = v(sblk(b), 4) if b in (0, 16) else "0"
            a(Op(f"v_mfma_f32_16x16x32_bf16 {v(sblk(b), 4)}, {v(WF + 4 * (b & 3), 4)}, {v(V_Q, 4)}, {cin}", nlg=f"k{b}"))
            if b + 3 < 17:
                a(self.k_read(b + 3))
            if b in (2, 8):
                a(late.pop(0))
        a(self.stamp("qk"))
        for m in range(3):
            a(self.v_read(m))
        m0, m1 = V_PT, V_PT + 1
        sc = [sblk(b) + r for b in range(17) for r in range(4)]
        a(f"v_max3_f32 {v(m0)}, {v(sc[0])}, {v(sc[1])}, {v(sc[2])}")
        a(f"v_max3_f32 {v(m1)}, {v(sc[3])}, {v(sc[4])}, {v(sc[5])}")
        for q in range(31):
            mm = m0 if q % 2 == 0 else m1
            a(f"v_max3_f32 {v(mm)}, {v(sc[6 + 2 * q])}, {v(sc[7 + 2 * q])}, {v(mm)}")
        a(self.stamp("max"))
        a(self.barrier(nvm=("hb0", "hb1")))
        a(self.stamp("hbbar"))
        a(self.signal_g1(2, V_PT + 2))
        a(f"""
        v_max_f32 {v(m0)}, {v(m0)}, {v(m1)}
        v_mov_b32 {v(m1)}, {v(m0)}
        v_permlane32_swap_b32 {v(m0)}, {v(m1)}
        v_max_f32 {v(m0)}, {v(m0)}, {v(m1)}
        v_mov_b32 {v(m1)}, {v(m0)}
        v_permlane16_swap_b32 {v(m0)}, {v(m1)}
        v_max_f32 {v(m0)}, {v(m0)}, {v(m1)}
        s_mov_b32 {s(S_T0)}, {C_EXP}
        v_mul_f32 {v(m0)}, -{v(m0)}, {s(S_T0)}
        """)
        hl = [self.h_load(g) for g in range(28)]
        for p in range(9):
            r = list(range(sblk(2 * p), sblk(2 * p) + (8 if p < 8 else 4)))
            ops = [f"v_fma_f32 {v(x)}, {v(x)}, {s(S_T0)}, {v(m0)}" for x in r]
            ops += [f"v_exp_f32 {v(x)}, {v(x)}" for x in r]
            ops += [f"v_cvt_pk_bf16_f32 {v(r[0] + q)}, {v(r[2 * q])}, {v(r[2 * q + 1])}" for q in range(len(r) // 2)]
            side = []
            if p >= 1:
                for m in (2 * p - 2, 2 * p - 1):
                    side.append([self.pv_mfma(m)] + (self.v_read(m + 3) if m + 3 < 18 else []))
            if p == c.hbpos - 1:
                side.append(self.poll_issue(V_PT + 2, V_GP, 0, "ph"))
            if p == c.hbpos:
                side.append(self.stamp("hp0") + self.poll_check(V_PT + 2, V_GP, 0, "ph") + self.stamp("hp1"))
            if p >= c.hbpos and c.stop > 2:
                k = (28 + 8 - c.hbpos) // (9 - c.hbpos)
                side += hl[:k]
                hl = hl[k:]
            a(interleave([[o] for o in ops], side, 2))
        a(self.stamp("exp"))
        a(self.pv_mfma(16))
        a(self.pv_mfma(17))
        if c.stop > 2:
            a(hl)
        le, lj = self.lab("even"), self.lab("den")
        t0, t1 = V_PT, V_PT + 1
        a(f"""
        s_bitcmp0_b32 {s(S_AH)}, 0
        s_cbranch_scc1 {le}
        s_nop 7
        v_mov_b32 {v(t0)}, {v(OACC)}
        v_mov_b32 {v(t1)}, {v(OACC)}
        s_mov_b64 vcc, 0xffff
        v_permlane32_swap_b32 {v(t0)}, {v(t1)}
        v_cndmask_b32 {v(OACC)}, {v(OACC)}, 0, vcc
        v_mov_b32 {v(t1)}, {v(t0)}
        s_nop 1
        v_permlane16_swap_b32 {v(t0)}, {v(t1)}
        s_branch {lj}
        {le}:
        s_nop 7
        v_mov_b32 {v(t0)}, {v(OACC + 4)}
        v_mov_b32 {v(t1)}, {v(OACC + 4)}
        s_mov_b32 vcc_lo, 0
        s_mov_b32 vcc_hi, 0xffff0000
        v_permlane32_swap_b32 {v(t1)}, {v(t0)}
        v_cndmask_b32 {v(OACC + 4)}, {v(OACC + 4)}, 0, vcc
        v_mov_b32 {v(t1)}, {v(t0)}
        s_nop 1
        v_permlane16_swap_b32 {v(t1)}, {v(t0)}
        {lj}:
        s_nop 1
        v_rcp_f32 {v(t0)}, {v(t0)}
        """)
        for q in range(8):
            a(f"v_mul_f32 {v(OACC + q)}, {v(t0)}, {v(OACC + q)}")
        for q in range(4):
            a(f"v_cvt_pk_bf16_f32 {v(OACC + q)}, {v(OACC + 2 * q)}, {v(OACC + 2 * q + 1)}")
        a(f"v_permlane32_swap_b32 {v(OACC)}, {v(OACC + 2)}\nv_permlane32_swap_b32 {v(OACC + 1)}, {v(OACC + 3)}")
        a(Op(f"buffer_store_dwordx4 {v(OACC, 4)}, {v(V_OSTV)}, {s(SRD_WS, 4)}, {s(S_OST)} offen sc1", vm="o"))
        a(self.stamp("aend"))

    def g3_addr(self):
        hh, t2, t3, t4 = TMP + 16, TMP + 17, TMP + 18, TMP + 19
        t = f"""
        v_lshrrev_b32 {v(hh)}, 5, {v(V_LANE)}
        v_bfe_u32 {v(t2)}, {v(V_LANE)}, 2, 2
        v_lshl_add_u32 {v(t3)}, {v(hh)}, 2, {v(t2)}
        s_lshl_b32 {s(S_T0)}, {s(S_KQ)}, 4
        v_add_u32 {v(t3)}, {s(S_T0)}, {v(t3)}
        v_lshlrev_b32 {v(t3)}, 7, {v(t3)}
        v_lshrrev_b32 {v(t2)}, 1, {v(t2)}
        v_lshl_add_u32 {v(t3)}, {v(t2)}, 6, {v(t3)}
        v_bfe_u32 {v(t2)}, {v(V_LANE)}, 4, 1
        v_lshl_add_u32 {v(t3)}, {v(t2)}, 5, {v(t3)}
        v_and_b32 {v(t2)}, 3, {v(V_LANE)}
        v_lshl_add_u32 {v(V_GA[0][0])}, {v(t2)}, 3, {v(t3)}
        v_xor_b32 {v(V_GA[0][1])}, 64, {v(V_GA[0][0])}
        v_add_u32 {v(V_GA[1][0])}, 0x10000, {v(V_GA[0][0])}
        v_add_u32 {v(V_GA[1][1])}, 0x10000, {v(V_GA[0][1])}
        v_add_u32 {v(V_GA[2][0])}, 0x20000, {v(V_GA[0][0])}
        v_add_u32 {v(V_GA[2][1])}, 0x20000, {v(V_GA[0][1])}
        """
        return [l.strip() for l in t.strip().split("\n")]

    def g3_addr2(self):
        hh, t2 = TMP + 16, TMP + 17
        t = f"""
        s_lshr_b32 {s(S_T0)}, {s(S_W)}, 2
        s_lshl_b32 {s(S_T0)}, {s(S_T0)}, 13
        v_add_u32 {v(V_EW[0])}, {s(S_T0)}, {v(V_L16)}
        v_add_u32 {v(V_EW[1])}, 0x20000, {v(V_EW[0])}
        s_lshl_b32 {s(S_T0)}, {s(S_KQ)}, 11
        v_add_u32 {v(V_ER[0])}, {s(S_T0)}, {v(V_EW[0])}
        v_add_u32 {v(V_ER[1])}, {s(S_T0)}, {v(V_EW[1])}
        v_and_b32 {v(t2)}, 31, {v(V_LANE)}
        v_mul_u32_u24 {v(t2)}, 896, {v(t2)}
        v_lshl_add_u32 {v(V_XO)}, {v(hh)}, 4, {v(t2)}
        """
        return [l.strip() for l in t.strip().split("\n")]

    def g3_read(self, n):
        gi, ch = n >> 1, n & 1
        slot = self.B_SLOT[gi] if gi < 28 else self.WO_SLOT[gi - 28]
        off = (slot & 7) * 8192
        d = WF + 4 * (n & 3)
        va = V_GA[slot >> 3][ch] if gi < 28 else V_GA[2][ch] if slot >> 3 else V_GA[0][ch]
        return [Op(f"ds_read_b64_tr_b16 {v(d, 2)}, {v(va)} offset:{off}", lg=f"g{n}a"),
                Op(f"ds_read_b64_tr_b16 {v(d + 2, 2)}, {v(va)} offset:{off + 1024}", lg=f"g{n}")]

    def g3_mfma(self, n):
        gi, ch = n >> 1, n & 1
        d = (FACC if gi < 28 else SACC) + 16 * ch
        b = XF + 4 * (gi if gi < 28 else gi - 28)
        c = "0" if gi in (0, 28) else v(d, 16)
        return Op(f"v_mfma_f32_32x32x16_bf16 {v(d, 16)}, {v(WF + 4 * (n & 3), 4)}, {v(b, 4)}, {c}",
                  nlg=f"g{n}", nvm=f"h{gi}" if gi < 28 else f"o{gi - 28}")

    def area_addr(self, regs, t, off):
        if t < 2:
            return regs[1], self.AREA[t] - 0x20000 + off
        return regs[0], self.AREA[t] + off

    def exchange_write(self, a, base):
        done = self.lab("xw")
        labs = [self.lab("xq") for _ in range(4)]
        a("s_nop 7\ns_nop 3")
        for kq in range(4):
            if kq < 3:
                a(f"s_cmp_lg_u32 {s(S_KQ)}, {kq}\ns_cbranch_scc1 {labs[kq]}")
            for Q in range(4):
                if Q == kq:
                    continue
                for hf in range(2):
                    r, off = self.area_addr(V_EW, (kq - Q - 1) % 4, Q * 2048 + hf * 1024)
                    a(f"ds_write_b128 {v(r)}, {v(base + 8 * Q + 4 * hf, 4)} offset:{off}")
            for q in range(8):
                a(f"v_mov_b32 {v(V_SUM + q)}, {v(base + 8 * kq + q)}")
            if kq < 3:
                a(f"s_branch {done}\n{labs[kq]}:")
        a.label(done)

    def exchange_read(self):
        ops = []
        for t in range(3):
            for hf in range(2):
                r, off = self.area_addr(V_ER, t, hf * 1024)
                ops.append(Op(f"ds_read_b128 {v(V_RD + 8 * t + 4 * hf, 4)}, {v(r)} offset:{off}", lg=f"e{t}{hf}"))
        for t in range(3):
            for q in range(8):
                ops.append(Op(f"v_add_f32 {v(V_SUM + q)}, {v(V_SUM + q)}, {v(V_RD + 8 * t + q)}", nlg=f"e{t}{q >> 2}"))
        return ops

    def gemm3(self, a):
        c = self.cfg
        a(self.g3_addr())
        a(self.barrier(nvm=("B0", "B1", "B2", "B3"), nlg=()))
        a(self.stamp("ginit"))
        for n in range(3):
            a(self.g3_read(n))
        issue = {0: [self.bdma(b) for b in range(14, 18)], 1: [self.bdma(b) for b in range(18, 20)],
                 2: [self.bdma(b) for b in range(20, 24)], 3: [self.bdma(b) for b in range(24, 28)],
                 4: [self.wodma(b) for b in range(4)], 5: [self.wodma(b) for b in range(4, 8)]}
        nb = [8 * st + 5 for st in range(7)]
        for G in range(8):
            rng = range(nb[G - 1] if G else 0, nb[G] if G < 7 else 56)
            side = {}
            if G == 1:
                side[rng[0]] = [self.signal([], S_OFLAG, V_SUM)]
            if G == c.pollo:
                side.setdefault(rng[0], []).append(self.poll_issue(V_SUM + 1, V_GP, "s" + str(S_T1), "po"))
            if G == c.pollo - 1:
                side.setdefault(rng[0], []).append(f"s_movk_i32 {s(S_T1)}, 4096")
            if G == 2:
                for q, o in enumerate(self.g3_addr2()):
                    side.setdefault(rng[1 + q // 2], []).append(o)
            if G == 6:
                side.setdefault(rng[1], []).append(
                    Op(f"buffer_load_dwordx4 {v(V_XRES, 4)}, {v(V_XO)}, {s(SRD_X, 4)}, {s(S_XOFF)} offen", vm="xr"))
            self.spread(side, rng, issue.get(G, []), 0 if G == 0 else 1)
            for n in rng:
                if n not in nb or n != rng[0]:
                    a(self.g3_mfma(n))
                if n + 3 < 56:
                    a(self.g3_read(n + 3))
                a(side.get(n, []))
            if G < 7:
                a(self.g3_mfma(nb[G]))
                if G < 6:
                    a(self.barrier(nvm=[f"B{b}" for b in range(4 * G + 4, 4 * G + 8)] + (["o"] if G == 0 else [])))
                else:
                    a(self.barrier())
                a(self.stamp(f"g{G}"))
        a(self.stamp("fend"))
        a(self.poll_check(V_SUM + 1, V_GP, "s" + str(S_T1), "po"))
        a(self.stamp("opoll"))
        for g in range(8):
            if g == 4:
                a(f"s_add_u32 {s(S_OLD)}, {s(S_OLD)}, 4096")
            a(Op(f"buffer_load_dwordx4 {v(XF + 4 * g, 4)}, {v(V_L16)}, {s(SRD_WS, 4)}, {s(S_OLD)} offen offset:{1024 * (g % 4)} sc1", vm=f"o{g}"))
        self.exchange_write(a, FACC)
        a(f"""
        s_lshr_b32 {s(S_T0)}, {s(S_KQ)}, 1
        s_lshl_b32 {s(S_T0)}, {s(S_T0)}, 10
        v_subrev_u32 {v(V_GA[0][0])}, {s(S_T0)}, {v(V_GA[0][0])}
        v_subrev_u32 {v(V_GA[0][1])}, {s(S_T0)}, {v(V_GA[0][1])}
        v_subrev_u32 {v(V_GA[2][0])}, {s(S_T0)}, {v(V_GA[1][0])}
        v_subrev_u32 {v(V_GA[2][1])}, {s(S_T0)}, {v(V_GA[1][1])}
        """)
        a.drain(vm=False)
        a(self.barrier(nvm=[f"WO{b}" for b in range(8)]))
        a(self.stamp("fx"))
        for n in range(56, 59):
            a(self.g3_read(n))
        F = V_SUM + 8
        e = TMP + 16
        valu = self.exchange_read()
        valu += [Op(f"v_mul_f32 {v(e + q)}, 0xbfb8aa3b, {v(V_SUM + q)}") for q in range(8)]
        valu += [Op(f"v_exp_f32 {v(e + q)}, {v(e + q)}") for q in range(8)]
        valu += [Op(f"v_add_f32 {v(e + q)}, 1.0, {v(e + q)}") for q in range(8)]
        valu += [Op(f"v_rcp_f32 {v(e + q)}, {v(e + q)}") for q in range(8)]
        valu += [Op(f"v_mul_f32 {v(F + q)}, {v(V_SUM + q)}, {v(e + q)}") for q in range(8)]
        for q in range(4):
            valu += [Op(f"v_lshlrev_b32 {v(e + 2 * q)}, 16, {v(V_XRES + q)}", nvm="xr"),
                     Op(f"v_and_b32 {v(e + 2 * q + 1)}, 0xffff0000, {v(V_XRES + q)}")]
        a(valu[:30])
        main = [[self.g3_mfma(n)] + (self.g3_read(n + 3) if n + 3 < 72 else []) for n in range(56, 72)]
        a(interleave(main, valu[30:], 0, 14))
        a(self.stamp("send"))
        a(self.barrier())
        self.exchange_write(a, SACC)
        a.drain(vm=False)
        a(self.barrier())
        a(self.exchange_read())
        for q in range(8):
            a(f"v_mul_f32 {v(V_SUM + q)}, {v(V_SUM + q)}, {v(F + q)}")
        for q in range(4):
            a(f"v_permlane32_swap_b32 {v(V_SUM + q)}, {v(V_SUM + 4 + q)}")
        for q in range(8):
            a(f"v_add_f32 {v(V_SUM + q)}, {v(V_SUM + q)}, {v(e + q)}")
        for q in range(4):
            a(f"v_cvt_pk_bf16_f32 {v(V_SUM + q)}, {v(V_SUM + 2 * q)}, {v(V_SUM + 2 * q + 1)}")
        a(Op(f"buffer_store_dwordx4 {v(V_SUM, 4)}, {v(V_XO)}, {s(SRD_OUT, 4)}, {s(S_XOFF)} offen", vm="out"))

    def finish(self, a):
        if self.cfg.prof == 2:
            a(f"""
            s_memtime s[98:99]
            s_memrealtime s[34:35]
            s_load_dwordx2 {s(SRD_W2, 2)}, s[0:1], 64
            s_waitcnt lgkmcnt(0)
            s_and_b32 {s(SRD_W2 + 1)}, {s(SRD_W2 + 1)}, 0xffff
            s_mov_b32 {s(SRD_W2 + 2)}, 64
            s_lshl_b32 {s(S_T0)}, {s(S_W)}, 8
            s_add_u32 {s(S_T0)}, {s(S_T0)}, s2
            s_cmp_eq_u32 {s(S_T0)}, {self.cfg.dbgwg}
            s_cselect_b32 {s(S_T1)}, 32, 64
            s_cmp_eq_u32 {s(S_T0)}, 0
            s_cselect_b32 {s(S_T0)}, 0, {s(S_T1)}
            s_sub_u32 s34, s34, {s(S_PROF + 14)}
            s_mov_b64 exec, 1
            """)
            for k, r in enumerate([34] + [S_PROF + 2 * k for k in range(1, 7)] + [98]):
                if k:
                    a(f"s_sub_u32 s{r}, s{r}, {s(S_PROF)}")
                a(f"v_mov_b32 {v(TMP)}, s{r}")
                a(f"buffer_store_dword {v(TMP)}, off, {s(SRD_W2, 4)}, {s(S_T0)} offset:{4 * k}")
                a("s_nop 1")
        elif self.cfg.prof:
            a("s_memtime s[98:99]\ns_memrealtime s[34:35]\ns_waitcnt lgkmcnt(0)")
            a(f"""
            s_lshl_b32 {s(S_T0)}, s2, 3
            s_add_u32 {s(S_T0)}, {s(S_T0)}, {s(S_W)}
            s_lshl_b32 {s(S_T0)}, {s(S_T0)}, 6
            s_add_u32 {s(S_T0)}, {s(S_T0)}, {PROF}
            s_mov_b64 exec, 1
            """)
            for k, r in enumerate([S_PROF + 2 * k for k in range(7)] + [98, S_PROF + 14, 34]):
                a(f"v_mov_b32 {v(TMP)}, s{r}")
                a(f"buffer_store_dword {v(TMP)}, off, {s(SRD_WS, 4)}, {s(S_T0)} offset:{4 * k}")
                a("s_nop 1")

    def build(self):
        c = self.cfg
        a = Stream()
        self.prologue(a)
        self.gemm1_pass1(a)
        a(f"s_cmp_ge_u32 {s(S_J)}, 12\ns_cbranch_scc1 L_typec")
        t = a.fork()
        self.gemm1_pass2(a, False)
        t.label("L_typec")
        self.gemm1_pass2(t, True)
        join(a, t)
        t("s_nop 1\ns_branch L_join")
        a.label("L_join")
        self.attention_entry(a)
        self.attention(a)
        n = a.fork()
        if c.stop > 2:
            a(f"s_cmp_eq_u32 {s(S_GN)}, 7\ns_cbranch_scc1 L_noout")
            self.gemm3(a)
            a.label("L_fin")
        else:
            a("s_branch L_noout\nL_fin:")
        n.label("L_noout")
        n.drain()
        n(self.barrier())
        n(self.signal([], S_OFLAG, V_SUM))
        n("s_branch L_fin")
        self.finish(a)
        a.label("L_end")
        a("s_endpgm")
        body = a.text() + t.text() + n.text() + "\n".join(("    " + l if not l.endswith(":") else l) for l in self.tail) + "\nL_code_end:\n"
        print(f"nops {a.nops + t.nops}, waits {a.waits}, lines {len(a.out)} + {len(t.out)}", file=sys.stderr)
        return wrap([(NAME + "_kernel", body, 256, 102, 256)], [(NAME + "_kernel", 256, 512, 163840)])


if __name__ == "__main__":
    cfg = Cfg()
    for arg in sys.argv[2:]:
        k, _, val = arg.partition("=")
        setattr(cfg, k, type(getattr(cfg, k))(val))
    open(sys.argv[1], "w").write(Gen(cfg).build())
```

```python
import sys
from emit import Stream, Op, interleave, join
from asmgen import NAME, wrap

FLAGS = 0x0
EPOCH = 0x8000
STAT = 0x10000
CS = 0x20000
POISON = 0x70000
QKV = 0x100000
HWS = 0x800000
OWS = 0x1000000
PROF = 0x1400000
WS_RECORDS = 0x2000000
QKV_TB, H_TB, O_TB = 192 * 512, 4 * 28 * 1024, 4 * 8 * 1024
NEG_BIG = 0xF149F2CA
C_EXP = 0x3E8B97F6

V_H2, V_LANE, V_L16, V_WQ, V_WF, V_WL, V_W2, V_XD, V_POLL = range(9)
V_XR = [9, 10, 11, 12]
V_WA = [13, 14, 15]
XF, ACC, WF, TMP = 16, 128, 208, 224
V_REC, V_MU = TMP + 24, TMP + 28
V_E, V_EVAL, V_EADR, V_PF = ACC + 48, TMP + 16, TMP + 17, ACC + 64
V_QLD, V_OSTV, V_VD, V_GP = V_WQ, V_WL, V_XD, V_WF
V_KE, V_KO, V_VE, V_VO = V_XR
V_Q = TMP + 28
S16, SP, OACC, V_PT = ACC, ACC + 4, ACC + 68, ACC + 76
FACC, SACC = ACC, ACC + 32
V_GA = [[TMP + 0, TMP + 1], [TMP + 2, TMP + 3], [TMP + 4, TMP + 5]]
V_EW, V_ER, V_XO = [TMP + 6, TMP + 7], [TMP + 8, TMP + 9], TMP + 10
V_XRES, V_SUM, V_RD = TMP + 12, ACC + 64, XF + 48

S_MA = 32
S_W, S_I, S_J, S_LDSW, S_NONCE = 3, 4, 5, 6, 7
S_LOFF = [8, 9, 10, 11, 12]
S_STEP12, S_X0, S_X1 = 13, 14, 15
S_PROF = 16
SRD_E = 32
SRD_X, SRD_WS, SRD_Q, SRD_L1, SRD_L2, SRD_W1, SRD_W3, SRD_W2, SRD_WO, SRD_OUT = range(36, 76, 4)
S_QST, S_QC = [76, 77, 78], [79, 80, 81]
S_HA, S_FLAG, S_MB = 82, 83, 84
S_CS, S_STAT = [86, 87], 88
S_BOFF, S_WOFF, S_AI, S_AH, S_GM = 89, 90, 91, 92, 93
S_T0, S_T1, S_T2, S_T3 = 94, 95, 96, 97
S_P98 = 98
S_SPIN, S_GN = 100, 101
S_KOFF, S_VOFF = [SRD_Q, SRD_Q + 1, SRD_Q + 2], [SRD_L1, SRD_L1 + 1, SRD_L1 + 2]
S_QOFF, S_OST, S_OFLAG = SRD_Q + 3, SRD_L1 + 3, SRD_L2
S_HLD, S_OLD, S_XOFF = SRD_L2 + 1, SRD_L2 + 2, SRD_L2 + 3
S_KQ = S_X0
S_EST, S_ESTEP = S_P98, S_P98 + 1


def v(i, n=1):
    return f"v{i}" if n == 1 else f"v[{i}:{i + n - 1}]"


def s(i, n=1):
    return f"s{i}" if n == 1 else f"s[{i}:{i + n - 1}]"


def acc(L):
    return ACC + 16 * L


def sblk(b):
    return S16 if b == 16 else SP + 4 * b


class Cfg:
    prof = 0
    rt = 0
    dbgwg = 133
    st = "binit,p1end,p2end,abar,aend,fend"
    stop = 99
    map1 = "4x8"
    n_pre = 10
    n_post = 0
    cap1 = 5
    cap2 = 3
    eld = -1
    eldlast = 1
    cpf = 0
    eiv = 2
    pollpos = 6
    sigp = 3
    pollp = 4
    sig0 = 10
    poll0 = 13
    pollo = 5
    hbpos = 3
    jmix = 1
    w2pf = 1
    pfrow = 0
    noe = 0
    caps = "5,5,5,5,5,5,7,4,3,3,3,3,3,3"
    cfast = 1
    pf = 1


class Gen:
    def __init__(self, cfg):
        self.cfg = cfg
        self.nlab = 0
        self.tail = []

    def lab(self, base):
        self.nlab += 1
        return f"L_{base}_{self.nlab}"

    def clock(self):
        return "s_memrealtime" if self.cfg.rt else "s_memtime"

    def stamp(self, name):
        names = self.cfg.st.split(",")
        if self.cfg.prof and name in names:
            return [f"{self.clock()} {s(S_PROF + 2 + 2 * names.index(name), 2)}"]
        return []

    def dma(self, slot, srd, voff, soff, tag, step=None, extra=""):
        ops = [Op(f"s_add_u32 m0, {s(S_LDSW)}, {slot * 8192}")]
        if step is not None:
            ops.append(Op(f"s_add_u32 {s(soff)}, {s(soff)}, {step}"))
        ops.append(Op(f"buffer_load_dwordx4 {v(voff)}, {s(srd, 4)}, {s(soff)} offen {extra} lds".replace("  ", " "), vm=tag))
        return ops

    W_UNITS = [(L, g) for g in range(7) for L in (0, 1, 2)] + [(L, g) for g in range(7) for L in (3, 4)]
    W_SLOT = list(range(8, 20)) + list(range(8, 20)) + [0, 1, 8, 9, 10, 2, 3, 11, 12, 13, 4]
    B_SLOT = [5, 6, 7, 0, 1, 8, 9, 10, 2, 3, 11, 12, 13, 4, 14, 15, 16, 17, 18, 19, 5, 6, 7, 0, 1, 8, 9, 10]
    WO_SLOT = [2, 3, 11, 12, 13, 4, 14, 15]
    AREA = [16 * 8192, 18 * 8192, 6 * 8192]

    def wdma(self, u):
        L, g = self.W_UNITS[u]
        srd = [SRD_Q, SRD_L1, SRD_L2, SRD_W1, SRD_W3][L]
        voff = [V_WQ, V_WL, V_WL, V_WF, V_WF][L]
        step = [64 * 2688, s(S_STEP12), s(S_STEP12), 64 * 3584, 64 * 3584][L]
        return self.dma(self.W_SLOT[u], srd, voff, S_LOFF[L], f"W{u}", step if g else None)

    def xdma(self, g, t):
        return self.dma(2 * (g & 3) + t, SRD_X, V_XD, S_X0 + t, f"X{g}{t}", 128 if g else None)

    def bdma(self, b):
        return self.dma(self.B_SLOT[b], SRD_W2, V_W2, S_BOFF, f"B{b}", 64 * 896 if b else None)

    def wodma(self, b):
        return self.dma(self.WO_SLOT[b], SRD_WO, V_W2, S_WOFF, f"WO{b}", 56 * 896 if b else None)

    def g1_dma_plan(self):
        c = self.cfg
        q = []
        for g in range(7):
            q += [(max(g - 3, 0), g - 1, self.xdma(g, t)) for t in range(2)]
            q += [(max(g - 2, 0) if g > 3 else 0, g - 1, self.wdma(u)) for u in range(3 * g, 3 * g + 3)]
        first = {21: 5, 22: 5, 23: 5, 24: 5, 25: 5, 26: 6, 27: 6, 28: 6, 29: 6, 30: 6, 31: 7, 32: 7, 33: 7, 34: 7}
        for u in range(21, 35):
            q.append((first[u], 6 + (u - 21) // 2, self.wdma(u)))
        for b, e in enumerate((7, 8, 8, 10, 11, 11, 12, 12, 13, 13)):
            q.append((e, 99, self.bdma(b)))
        n0 = c.n_pre + c.n_post
        init = [x[2] for x in q[:n0]]
        q = q[n0:]
        plan = {}
        for G in range(14):
            cap = int(c.caps.split(",")[G])
            if G == c.pollp + 1:
                cap -= 2
            pick = [x for x in q if x[0] <= G][:cap]
            for x in pick:
                assert G <= x[1], ("late DMA", G, x[2][-1].vm)
                q.remove(x)
            plan[G] = [x[2] for x in pick]
        assert all(x[1] == 99 for x in q)
        plan["rest"] = [x[2] for x in q]
        return init, plan

    def signal(self, soff_ops, soff, vt):
        l = self.lab("sig")
        return [[f"s_cmp_lg_u32 {s(S_W)}, 0", f"s_cbranch_scc1 {l}",
                 f"v_mov_b32 {v(vt)}, {s(S_NONCE)}", "s_mov_b64 exec, 1"] + soff_ops +
                [f"buffer_store_dword {v(vt)}, off, {s(SRD_WS, 4)}, {s(soff)} sc1",
                 "s_mov_b64 exec, -1", f"{l}:"]]

    def signal_g1(self, stage, vt):
        return self.signal([f"s_add_u32 {s(S_T3)}, {s(S_FLAG)}, {stage * 4096}"], S_T3, vt)

    def signal_pre(self):
        l = self.lab("sigp")
        return [[f"s_cmp_lg_u32 {s(S_W)}, 0", f"s_cbranch_scc1 {l}",
                 f"s_lshl_b32 {s(S_T2)}, {s(S_J)}, 8", f"s_lshl_b32 {s(S_T3)}, {s(S_I)}, 2",
                 f"s_add_u32 {s(S_T2)}, {s(S_T2)}, {s(S_T3)}", f"s_add_u32 {s(S_T2)}, {s(S_T2)}, {5 * 4096}",
                 f"s_add_u32 {s(S_T3)}, {s(S_FLAG)}, {4 * 4096}",
                 f"v_mov_b32 {v(TMP)}, {s(S_NONCE)}", f"v_mov_b32 {v(TMP + 1)}, {s(S_T2)}",
                 f"v_writelane_b32 {v(TMP + 1)}, {s(S_T3)}, 0",
                 "s_mov_b64 exec, 3",
                 f"buffer_store_dword {v(TMP)}, {v(TMP + 1)}, {s(SRD_WS, 4)}, 0 offen sc1",
                 "s_mov_b64 exec, -1", f"{l}:"]]

    def poll_text(self, vdst, vaddr, off):
        return f"buffer_load_dword {v(vdst)}, {v(vaddr)}, {s(SRD_WS, 4)}, {off} offen sc1"

    def poll_issue(self, vdst, vaddr, off, tag):
        return Op(self.poll_text(vdst, vaddr, off), vm=tag)

    def poll_check(self, vdst, vaddr, off, tag):
        spin, back = self.lab("spin"), self.lab("back")
        self.tail += [f"{spin}:", f"s_mov_b32 {s(S_SPIN)}, 0", f"{spin}_l:",
                      self.poll_text(vdst, vaddr, off),
                      f"s_add_u32 {s(S_SPIN)}, {s(S_SPIN)}, 1",
                      f"s_cmp_gt_u32 {s(S_SPIN)}, 0x4000", f"s_cbranch_scc1 {spin}_x",
                      "s_waitcnt vmcnt(0)",
                      f"v_cmp_ne_u32 vcc, {s(S_NONCE)}, {v(vdst)}", "s_nop 1",
                      "s_cmp_lg_u64 vcc, 0", f"s_cbranch_scc1 {spin}_l",
                      f"{spin}_x:", "s_waitcnt vmcnt(0)", f"s_branch {back}"]
        return [[Op(f"v_cmp_ne_u32 vcc, {s(S_NONCE)}, {v(vdst)}", nvm=tag),
                 "s_cmp_lg_u64 vcc, 0", f"s_cbranch_scc1 {spin}", f"{back}:"]]

    def barrier(self, nvm=(), nlg=()):
        return Op("s_barrier", nvm=nvm, nlg=nlg)

    def srd(self, r, nrec):
        return f"s_and_b32 {s(r + 1)}, {s(r + 1)}, 0xffff\ns_mov_b32 {s(r + 2)}, {nrec}\ns_mov_b32 {s(r + 3)}, 0x20000"

    def prologue(self, a):
        c = self.cfg
        a("s_cmp_ge_u32 s2, 256\ns_cbranch_scc1 L_end")
        if c.prof:
            a(f"{self.clock()} {s(S_PROF, 2)}")
            a(f"s_memrealtime {s(S_PROF + 14, 2)}")
        for srd, off in ((SRD_X, 0), (SRD_Q, 8), (SRD_W1, 32), (SRD_W3, 40), (SRD_WS, 72)):
            a(f"s_load_dwordx2 {s(srd, 2)}, s[0:1], {off}")
        a(f"v_readfirstlane_b32 {s(S_W)}, v0\nv_and_b32 {v(V_LANE)}, 63, v0")
        self.code_prefetch(a)
        ib, jb = {"4x8": (2, 1), "8x4": (1, 2), "16x2": (3, 0)}[c.map1]
        row, c8, t2, t4 = TMP, TMP + 1, TMP + 2, TMP + 4
        init, self.plan = self.g1_dma_plan()
        a(f"""
        s_and_b32 {s(S_I)}, s2, {(1 << ib) - 1}
        s_lshl_b32 {s(S_I)}, {s(S_I)}, {4 - ib}
        s_bfe_u32 {s(S_T0)}, s2, {hex(((4 - ib) << 16) | 3)}
        s_add_u32 {s(S_I)}, {s(S_I)}, {s(S_T0)}
        v_lshrrev_b32 {v(row)}, 3, v0
        v_and_b32 {v(c8)}, 7, v0
        v_bfe_u32 {v(t4)}, v0, 4, 3
        v_mul_u32_u24 {v(V_W2)}, 896, {v(row)}
        v_xor_b32 {v(t4)}, {v(t4)}, {v(c8)}
        s_lshl_b32 {s(S_LDSW)}, {s(S_W)}, 4
        v_lshl_add_u32 {v(V_XD)}, {v(t4)}, 4, {v(V_W2)}
        s_mul_i32 {s(S_X0)}, {s(S_I)}, {128 * 896}
        s_add_u32 {s(S_X1)}, {s(S_X0)}, {64 * 896}
        s_waitcnt lgkmcnt(0)
        """)
        a(self.stamp("karg"))
        a(self.srd(SRD_X, 2048 * 896))
        a(init[0:2])
        a(f"""
        s_lshr_b32 {s(S_J)}, s2, {7 - ib}
        s_lshl_b32 {s(S_J)}, {s(S_J)}, {jb}
        s_bfe_u32 {s(S_T0)}, s2, {hex((jb << 16) | ib)}
        s_add_u32 {s(S_J)}, {s(S_J)}, {s(S_T0)}
        v_lshrrev_b32 {v(t2)}, 2, v0
        v_and_b32 {v(t2)}, 4, {v(t2)}
        v_xor_b32 {v(t2)}, {v(t2)}, {v(c8)}
        v_lshrrev_b32 {v(t4)}, 2, {v(t2)}
        v_sub_u32 {v(t4)}, {v(t2)}, {v(t4)}
        v_mul_u32_u24 {v(V_WQ)}, 2688, {v(row)}
        v_lshl_add_u32 {v(V_WQ)}, {v(t4)}, 4, {v(V_WQ)}
        s_mul_i32 {s(S_T0)}, {s(S_J)}, 3
        s_sub_u32 {s(S_T0)}, {s(S_T0)}, 24
        s_cmp_ge_u32 {s(S_J)}, 12
        s_cselect_b32 {s(S_QC[0])}, {s(S_T0)}, {s(S_J)}
        s_mul_i32 {s(S_LOFF[0])}, {s(S_QC[0])}, 112
        """)
        a(self.srd(SRD_Q, 448 * 2688))
        a(init[2])
        a(self.srd(SRD_W1, 448 * 3584))
        a(self.srd(SRD_W3, 448 * 3584))
        a(f"""
        v_mul_u32_u24 {v(V_WF)}, 3584, {v(row)}
        s_lshl_b32 {s(S_T2)}, {s(S_J)}, 7
        s_cmp_ge_u32 {s(S_J)}, 12
        s_cselect_b64 vcc, -1, 0
        v_lshl_add_u32 {v(V_WF)}, {v(t2)}, 4, {v(V_WF)}
        s_cselect_b32 {s(S_LOFF[1])}, {s(S_LOFF[0])}, {s(S_T2)}
        s_cselect_b32 {s(S_T1)}, 112, 0
        s_cselect_b64 {s(SRD_L1, 2)}, {s(SRD_Q, 2)}, {s(SRD_W1, 2)}
        s_cselect_b64 {s(SRD_L2, 2)}, {s(SRD_Q, 2)}, {s(SRD_W3, 2)}
        s_cselect_b64 {s(SRD_L1 + 2, 2)}, {s(SRD_Q + 2, 2)}, {s(SRD_W1 + 2, 2)}
        s_cselect_b64 {s(SRD_L2 + 2, 2)}, {s(SRD_Q + 2, 2)}, {s(SRD_W1 + 2, 2)}
        v_cndmask_b32 {v(V_WL)}, {v(V_WF)}, {v(V_WQ)}, vcc
        s_mov_b32 {s(S_STEP12)}, {64 * 3584}
        s_cselect_b32 {s(S_STEP12)}, {64 * 2688}, {s(S_STEP12)}
        s_add_u32 {s(S_LOFF[1])}, {s(S_LOFF[1])}, {s(S_T1)}
        s_add_u32 {s(S_LOFF[2])}, {s(S_LOFF[1])}, {s(S_T1)}
        """)
        a(init[3:5])
        if c.cpf:
            self.coop_prefetch(a, ib, jb)
        a(self.stamp("dma5"))
        a(f"s_load_dword {s(S_NONCE)}, {s(SRD_WS, 2)}, {EPOCH}")
        for srd, off in ((SRD_W2, 48), (SRD_WO, 16), (SRD_OUT, 56)):
            a(f"s_load_dwordx2 {s(srd, 2)}, s[0:1], {off}")
        a(init[5:c.n_pre])
        a(self.stamp("dma"))
        a(f"""
        s_add_u32 {s(S_LOFF[3])}, {s(S_T2)}, {12 * 128}
        s_mov_b32 {s(S_LOFF[4])}, {s(S_LOFF[3])}
        v_lshl_add_u32 {v(V_W2)}, {v(t2)}, 4, {v(V_W2)}
        s_lshr_b32 {s(S_W)}, {s(S_W)}, 6
        """)
        self.pre_setup(a)
        if c.eld < 0:
            a(self.pre_loads())
        a(self.stamp("eld"))
        self.setup_rest(a)
        a(init[c.n_pre:])
        a(self.stamp("setup"))

    def coop_prefetch(self, a, ib, jb):
        g, l15, off, hi = V_PF + 4, V_PF + 5, V_PF + 6, V_PF + 7
        nx, nw = 128 >> (4 - jb), 64 >> (4 - ib)
        a(f"""
        s_lshr_b32 {s(S_T0)}, {s(S_W)}, 6
        s_add_u32 {s(S_T0)}, {s(S_T0)}, {self.cfg.cpf}
        s_cmp_ge_u32 {s(S_T0)}, 7
        s_cbranch_scc1 L_nocpf
        v_lshrrev_b32 {v(g)}, 4, {v(V_LANE)}
        v_and_b32 {v(l15)}, 15, {v(V_LANE)}
        s_lshr_b32 {s(S_T1)}, {s(S_J)}, {jb}
        s_mul_i32 {s(S_T1)}, {s(S_T1)}, {nx * 896}
        s_lshl_b32 {s(S_T3)}, {s(S_T0)}, 7
        s_add_u32 {s(S_T1)}, {s(S_T1)}, {s(S_T3)}
        s_add_u32 {s(S_T1)}, {s(S_T1)}, {s(S_X0)}
        v_mul_u32_u24 {v(off)}, 896, {v(l15)}
        s_and_b32 {s(S_T3)}, {s(S_I)}, {(1 << (4 - ib)) - 1}
        s_mul_i32 {s(S_T3)}, {s(S_T3)}, {nw}
        s_lshl_b32 {s(S_T0)}, {s(S_T0)}, 6
        s_add_u32 {s(S_T0)}, {s(S_T0)}, {s(S_T3)}
        v_add_u32 {v(l15)}, {s(S_T0)}, {v(l15)}
        s_mov_b64 exec, 0xffff
        buffer_load_dword {v(hi)}, {v(off)}, {s(SRD_X, 4)}, {s(S_T1)} offen
        s_mov_b64 exec, -1
        s_lshr_b32 {s(S_T0)}, {s(S_STEP12)}, 6
        v_mul_u32_u24 {v(off)}, 2688, {v(l15)}
        v_mul_u32_u24 {v(g)}, {s(S_T0)}, {v(l15)}
        s_mov_b64 exec, 0xffff
        buffer_load_dword {v(hi)}, {v(off)}, {s(SRD_Q, 4)}, {s(S_LOFF[0])} offen
        buffer_load_dword {v(hi)}, {v(off)}, {s(SRD_Q, 4)}, {s(S_LOFF[0])} offen offset:108
        buffer_load_dword {v(hi)}, {v(g)}, {s(SRD_L1, 4)}, {s(S_LOFF[1])} offen
        buffer_load_dword {v(hi)}, {v(g)}, {s(SRD_L2, 4)}, {s(S_LOFF[2])} offen offset:108
        s_mov_b64 exec, -1
        L_nocpf:
        """)

    def pre_setup(self, a):
        ve, t2, t3, r = TMP + 18, TMP + 19, TMP + 7, TMP + 8
        a(f"""
        s_cmp_ge_u32 {s(S_J)}, 12
        s_cselect_b32 {s(S_T0)}, 3, 1
        s_cmp_lt_u32 {s(S_W)}, {s(S_T0)}
        s_cselect_b32 {s(S_T3)}, 1, 0
        s_cselect_b64 {s(SRD_E + 2, 2)}, {s(SRD_Q + 2, 2)}, {s(SRD_W1 + 2, 2)}
        s_movk_i32 {s(S_T1)}, 3584
        s_cselect_b32 {s(S_T1)}, 2688, {s(S_T1)}
        s_bitcmp1_b32 {s(S_W)}, 0
        s_cselect_b64 {s(SRD_E, 2)}, {s(SRD_W1, 2)}, {s(SRD_W3, 2)}
        s_cmp_eq_u32 {s(S_T3)}, 1
        s_cselect_b64 {s(SRD_E, 2)}, {s(SRD_Q, 2)}, {s(SRD_E, 2)}
        s_cmp_eq_u32 {s(S_W)}, 1
        s_cselect_b32 {s(S_T2)}, {s(S_LOFF[1])}, {s(S_LOFF[0])}
        s_cmp_eq_u32 {s(S_W)}, 2
        s_cselect_b32 {s(S_T2)}, {s(S_LOFF[2])}, {s(S_T2)}
        s_sub_u32 {s(S_T2)}, {s(S_T2)}, {s(S_STEP12) if self.cfg.n_pre == 10 else 0}
        s_cmp_eq_u32 {s(S_W)}, 0
        s_cselect_b32 {s(S_T0)}, {64 * 2688 if self.cfg.n_pre == 10 else 0}, 0
        s_cselect_b32 {s(S_T2)}, {s(S_LOFF[0])}, {s(S_T2)}
        s_sub_u32 {s(S_T2)}, {s(S_T2)}, {s(S_T0)}
        s_cmp_ge_u32 {s(S_W)}, 3
        s_cselect_b32 {s(S_T2)}, {s(S_LOFF[3])}, {s(S_T2)}
        s_mul_i32 {s(S_ESTEP)}, {s(S_T1)}, 7
        s_mul_i32 {s(S_EST)}, {s(S_ESTEP)}, {s(S_I)}
        s_lshl_b32 {s(S_EST)}, {s(S_EST)}, 2
        s_add_u32 {s(S_EST)}, {s(S_EST)}, {s(S_T2)}
        v_lshrrev_b32 {v(r)}, 3, {v(V_LANE)}
        v_lshrrev_b32 {v(t2)}, 2, {v(TMP + 1)}
        v_and_b32 {v(t2)}, {s(S_T3)}, {v(t2)}
        v_sub_u32 {v(t2)}, {v(TMP + 1)}, {v(t2)}
        v_mul_u32_u24 {v(ve)}, {s(S_T1)}, {v(r)}
        v_lshl_add_u32 {v(ve)}, {v(t2)}, 4, {v(ve)}
        v_cmp_gt_u32 vcc, 7, {v(r)}
        v_mov_b32 {v(t3)}, 0x7ff00000
        v_cndmask_b32 {v(ve)}, {v(t3)}, {v(ve)}, vcc
        v_mov_b32 {v(t2)}, {v(ve)}
        s_cmp_lt_u32 {s(S_W)}, 5
        s_cbranch_scc1 L_e_src
        s_lshl_b32 {s(S_T0)}, {s(S_I)}, 4
        s_add_u32 {s(S_T0)}, {s(S_T0)}, {s(S_J)}
        s_lshl_b32 {s(S_T0)}, {s(S_T0)}, 1
        s_add_u32 {s(S_T0)}, {s(S_T0)}, {s(S_W)}
        s_sub_u32 {s(S_T0)}, {s(S_T0)}, 5
        s_mul_i32 {s(S_EST)}, {s(S_T0)}, {4 * 896}
        s_movk_i32 {s(S_ESTEP)}, 256
        s_mov_b64 {s(SRD_E, 2)}, {s(SRD_X, 2)}
        s_cmp_eq_u32 {s(S_W)}, 7
        s_cselect_b32 {s(SRD_E + 2)}, 0, {s(SRD_X + 2)}
        v_lshrrev_b32 {v(r)}, 4, {v(V_LANE)}
        v_and_b32 {v(t2)}, 15, {v(V_LANE)}
        v_mul_u32_u24 {v(ve)}, 896, {v(r)}
        v_cmp_gt_u32 vcc, 8, {v(t2)}
        v_lshl_add_u32 {v(ve)}, {v(t2)}, 4, {v(ve)}
        v_cndmask_b32 {v(t2)}, {v(t3)}, {v(ve)}, vcc
        L_e_src:
        """)
        if self.cfg.noe:
            a(f"s_mov_b32 {s(SRD_E + 2)}, 0")

    def pre_loads(self):
        ops = []
        for q in range(4):
            ops.append(([f"s_add_u32 {s(S_EST)}, {s(S_EST)}, {s(S_ESTEP)}"] if q else []) +
                       [Op(f"buffer_load_dwordx4 {v(V_E + 4 * q, 4)}, {v(TMP + (18 if q < 3 else 19))}, {s(SRD_E, 4)}, {s(S_EST)} offen", vm=f"E{q}")])
        return ops

    def code_prefetch(self, a):
        c = self.cfg
        if not c.pf:
            return
        off, ad = XF + 104, XF + 106
        a(f"s_getpc_b64 {s(S_T0, 2)}\nL_pc:")
        if c.pf == 1:
            a(f"v_lshlrev_b32 {v(off)}, 7, v0")
        else:
            a(f"""
            s_bfe_u32 {s(S_T2)}, s2, 0x20003
            s_add_u32 {s(S_T2)}, {s(S_T2)}, 1
            s_cmp_eq_u32 {s(S_W)}, 448
            s_cselect_b32 {s(S_T2)}, 0, {s(S_T2)}
            s_cmp_ge_u32 {s(S_W)}, 384
            s_cselect_b32 {s(S_T2)}, {s(S_T2)}, 8
            s_lshl_b32 {s(S_T2)}, {s(S_T2)}, 13
            v_lshl_add_u32 {v(off)}, {v(V_LANE)}, 7, {s(S_T2)}
            """)
        a(f"""
        v_mov_b32 {v(ad + 1)}, {s(S_T1)}
        v_add_co_u32 {v(ad)}, vcc, {s(S_T0)}, {v(off)}
        v_addc_co_u32 {v(ad + 1)}, vcc, 0, {v(ad + 1)}, vcc
        v_cmp_gt_u32 vcc, L_code_end-L_pc, {v(off)}
        s_and_saveexec_b64 {s(S_T2, 2)}, vcc
        s_cbranch_execz L_nopf
        global_load_dword {v(off)}, {v(ad, 2)}, off
        L_nopf:
        s_mov_b64 exec, -1
        """)

    def setup_rest(self, a):
        cw, rb = S_T0, S_T1
        a(f"""
        s_lshr_b32 {s(cw)}, {s(S_W)}, 2
        s_and_b32 {s(rb)}, {s(S_W)}, 3
        s_cmp_eq_u32 {s(cw)}, 0
        s_cselect_b32 {s(S_MB)}, 0, -1
        s_mov_b32 {s(S_MB + 1)}, 0
        s_lshl_b32 {s(S_T2)}, {s(S_I)}, 2
        s_add_u32 {s(S_T2)}, {s(S_T2)}, {s(rb)}
        s_lshl_b32 {s(S_STAT)}, {s(S_T2)}, 9
        s_add_u32 {s(S_STAT)}, {s(S_STAT)}, {STAT}
        s_mul_i32 {s(S_HA)}, {s(S_T2)}, {H_TB}
        s_mul_i32 {s(S_QST[0])}, {s(S_T2)}, {QKV_TB}
        s_mul_i32 {s(S_T2)}, {s(cw)}, {2 * 28672}
        s_add_u32 {s(S_HA)}, {s(S_HA)}, {s(S_T2)}
        s_lshl_b32 {s(S_T2)}, {s(S_J)}, 10
        s_add_u32 {s(S_HA)}, {s(S_HA)}, {s(S_T2)}
        s_add_u32 {s(S_HA)}, {s(S_HA)}, {HWS}
        s_lshl_b32 {s(S_T2)}, {s(cw)}, 11
        s_add_u32 {s(S_QST[0])}, {s(S_QST[0])}, {s(S_T2)}
        s_lshl_b32 {s(S_T2)}, {s(S_QC[0])}, 12
        s_add_u32 {s(S_QST[0])}, {s(S_QST[0])}, {s(S_T2)}
        s_add_u32 {s(S_QST[0])}, {s(S_QST[0])}, {QKV}
        s_add_u32 {s(S_QST[1])}, {s(S_QST[0])}, 4096
        s_add_u32 {s(S_QST[2])}, {s(S_QST[0])}, 8192
        s_add_u32 {s(S_QC[1])}, {s(S_QC[0])}, 1
        s_add_u32 {s(S_QC[2])}, {s(S_QC[0])}, 2
        """)
        for k in range(3):
            a(f"s_bitcmp1_b32 {s(S_QC[k])}, 3\ns_cselect_b32 {s(S_QC[k])}, 0, 0x3f80")
        a(f"""
        s_lshl_b32 {s(S_FLAG)}, {s(S_I)}, 8
        s_lshl_b32 {s(S_T2)}, {s(S_J)}, 2
        s_add_u32 {s(S_FLAG)}, {s(S_FLAG)}, {s(S_T2)}
        s_lshl_b32 {s(S_CS[0])}, {s(S_J)}, 14
        s_add_u32 {s(S_CS[0])}, {s(S_CS[0])}, {s(S_LDSW)}
        s_add_u32 {s(S_CS[0])}, {s(S_CS[0])}, {CS}
        s_add_u32 {s(S_CS[1])}, {s(S_CS[0])}, 8192
        s_cmp_lt_u32 {s(S_W)}, 2
        s_cselect_b32 {s(S_CS[1])}, {s(S_CS[1])}, {WS_RECORDS}
        s_and_b32 {s(S_T2)}, s2, 7
        s_lshr_b32 {s(S_T3)}, s2, 3
        s_lshl_b32 {s(S_AH)}, {s(S_T2)}, 1
        s_lshl_b32 {s(S_GM)}, {s(S_T2)}, 2
        s_and_b32 {s(S_T2)}, {s(S_T3)}, 1
        s_add_u32 {s(S_AH)}, {s(S_AH)}, {s(S_T2)}
        s_lshr_b32 {s(S_AI)}, {s(S_T3)}, 1
        s_and_b32 {s(S_T2)}, {s(S_T3)}, 3
        s_add_u32 {s(S_GM)}, {s(S_GM)}, {s(S_T2)}
        s_lshr_b32 {s(S_GN)}, {s(S_T3)}, 2
        s_lshl_b32 {s(S_BOFF)}, {s(S_GN)}, 7
        s_mov_b32 {s(S_WOFF)}, {s(S_BOFF)}
        """)
        l31, hh, t2, t3 = TMP + 2, TMP + 3, TMP + 4, TMP + 6
        a(f"""
        v_and_b32 {v(l31)}, 31, {v(V_LANE)}
        v_lshrrev_b32 {v(hh)}, 5, {v(V_LANE)}
        v_bfe_u32 {v(t2)}, {v(V_LANE)}, 1, 3
        v_xor_b32 {v(t2)}, {v(t2)}, {v(hh)}
        v_lshlrev_b32 {v(t2)}, 4, {v(t2)}
        v_lshl_add_u32 {v(t2)}, {v(l31)}, 7, {v(t2)}
        s_lshl_b32 {s(S_T2)}, {s(rb)}, 12
        v_add_u32 {v(V_XR[0])}, {s(S_T2)}, {v(t2)}
        v_xor_b32 {v(V_XR[1])}, 32, {v(V_XR[0])}
        v_xor_b32 {v(V_XR[2])}, 64, {v(V_XR[0])}
        v_xor_b32 {v(V_XR[3])}, 0x60, {v(V_XR[0])}
        v_bfe_u32 {v(t2)}, {v(V_LANE)}, 2, 2
        v_lshl_add_u32 {v(t3)}, {v(hh)}, 3, {v(t2)}
        v_lshlrev_b32 {v(t3)}, 7, {v(t3)}
        v_lshrrev_b32 {v(t2)}, 1, {v(t2)}
        v_xor_b32 {v(t2)}, {s(cw)}, {v(t2)}
        v_lshl_add_u32 {v(t3)}, {v(t2)}, 6, {v(t3)}
        v_bfe_u32 {v(hh)}, {v(V_LANE)}, 4, 1
        v_lshl_add_u32 {v(t3)}, {v(hh)}, 5, {v(t3)}
        v_and_b32 {v(t2)}, 3, {v(V_LANE)}
        v_lshl_add_u32 {v(V_WA[0])}, {v(t2)}, 3, {v(t3)}
        v_add_u32 {v(V_WA[1])}, 0x10000, {v(V_WA[0])}
        v_add_u32 {v(V_WA[2])}, 0x20000, {v(V_WA[0])}
        v_lshlrev_b32 {v(V_L16)}, 4, {v(V_LANE)}
        v_add_u32 {v(V_H2)}, 28672, {v(V_L16)}
        v_mov_b32 {v(V_EADR)}, 0
        s_lshl_b32 {s(S_T2)}, {s(S_I)}, 8
        s_lshl_b32 {s(S_T3)}, {s(S_J)}, 8
        s_add_u32 {s(S_T2)}, {s(S_T2)}, {4 * 4096}
        s_add_u32 {s(S_T3)}, {s(S_T3)}, {5 * 4096}
        s_sub_u32 {s(S_T3)}, {s(S_T3)}, {s(S_T2)}
        v_and_b32 {v(t2)}, 15, {v(V_LANE)}
        v_mul_lo_u32 {v(hh)}, {v(hh)}, {s(S_T3)}
        v_lshl_add_u32 {v(V_POLL)}, {v(t2)}, 2, {v(hh)}
        v_add_u32 {v(V_POLL)}, {s(S_T2)}, {v(V_POLL)}
        """)

    def pre_cols(self, cond):
        A = [TMP + 8 + e for e in range(8)]
        val, adr = V_EVAL, V_EADR
        l = self.lab("ecol")
        t = [cond, f"s_cbranch_scc1 {l}"] + [x.strip() for x in f"""
        s_movk_i32 {s(S_T0)}, 0x3f80
        s_mov_b32 {s(S_T1)}, 0x3f800000
        s_lshl_b32 {s(S_EST)}, {s(S_J)}, 14
        s_lshl_b32 {s(S_T2)}, {s(S_W)}, 11
        s_add_u32 {s(S_EST)}, {s(S_EST)}, {s(S_T2)}
        s_lshl_b32 {s(S_T2)}, {s(S_I)}, 7
        s_add_u32 {s(S_EST)}, {s(S_EST)}, {s(S_T2)}
        s_add_u32 {s(S_EST)}, {s(S_EST)}, {CS}
        s_bfe_u32 {s(S_T2)}, {s(S_I)}, 0x10001
        s_lshl_b32 {s(S_T2)}, {s(S_T2)}, 6
        v_lshrrev_b32 {v(val)}, 4, {v(V_LANE)}
        v_and_b32 {v(adr)}, 0x70, {v(V_L16)}
        v_lshl_add_u32 {v(adr)}, {v(val)}, 2, {v(adr)}
        v_xor_b32 {v(adr)}, {s(S_T2)}, {v(adr)}
        """.strip().split("\n")]
        t += [f"v_mov_b32 {v(A[e])}, 0" for e in range(8)]
        for q in range(4):
            for k in range(4):
                t.append(f"v_dot2c_f32_bf16 {v(A[2 * k])}, {s(S_T0)}, {v(V_E + 4 * q + k)}")
                t.append(f"v_dot2c_f32_bf16 {v(A[2 * k + 1])}, {s(S_T1)}, {v(V_E + 4 * q + k)}")
        t += [f"v_permlane32_swap_b32 {v(A[e])}, {v(A[e + 4])}" for e in range(4)]
        t += [f"v_add_f32 {v(A[e])}, {v(A[e])}, {v(A[e + 4])}" for e in range(4)]
        t += [f"v_permlane16_swap_b32 {v(A[e])}, {v(A[e + 2])}" for e in range(2)]
        t += [f"v_add_f32 {v(A[e])}, {v(A[e])}, {v(A[e + 2])}" for e in range(2)]
        t += [f"v_add_f32_dpp {v(A[e])}, {v(A[e])}, {v(A[e])} row_ror:8 row_mask:0xf bank_mask:0xf" for e in range(2)]
        t += [f"v_cvt_pk_bf16_f32 {v(val)}, {v(A[0])}, {v(A[1])}", f"{l}:"]
        return [t]

    def pre_rows(self):
        A = [TMP + 8 + e for e in range(8)]
        val, adr = V_EVAL, V_EADR
        done, w7 = self.lab("erow"), self.lab("ew7")
        inv = 0x3B124925
        t = [x.strip() for x in f"""
        s_cmp_lt_u32 {s(S_W)}, 5
        s_cbranch_scc1 {done}
        s_cmp_eq_u32 {s(S_W)}, 7
        s_cbranch_scc1 {w7}
        s_mov_b32 {s(S_T0)}, 0x3f803f80
        s_lshl_b32 {s(S_EST)}, {s(S_I)}, 4
        s_add_u32 {s(S_EST)}, {s(S_EST)}, {s(S_J)}
        s_lshl_b32 {s(S_EST)}, {s(S_EST)}, 1
        s_add_u32 {s(S_EST)}, {s(S_EST)}, {s(S_W)}
        s_lshl_b32 {s(S_EST)}, {s(S_EST)}, 6
        s_add_u32 {s(S_EST)}, {s(S_EST)}, {STAT - 5 * 64}
        v_and_b32 {v(val)}, 3, {v(V_LANE)}
        v_and_b32 {v(adr)}, 0x30, {v(V_LANE)}
        v_lshl_add_u32 {v(adr)}, {v(val)}, 2, {v(adr)}
        """.strip().split("\n")]
        t += [f"v_mov_b32 {v(A[e])}, 0" for e in range(4)]
        for x in range(V_E, V_E + 16):
            t.append(f"v_dot2c_f32_bf16 {v(A[2 * (x & 1)])}, {s(S_T0)}, {v(x)}")
            t.append(f"v_dot2c_f32_bf16 {v(A[2 * (x & 1) + 1])}, {v(x)}, {v(x)}")
        t += [f"v_add_f32 {v(A[0])}, {v(A[0])}, {v(A[2])}", f"v_add_f32 {v(A[1])}, {v(A[1])}, {v(A[3])}"]
        for pat in ("quad_perm:[1,0,3,2]", "quad_perm:[2,3,0,1]", "row_half_mirror", "row_mirror"):
            t += [f"v_add_f32_dpp {v(A[e])}, {v(A[e])}, {v(A[e])} {pat} row_mask:0xf bank_mask:0xf" for e in range(2)]
        t += [x.strip() for x in f"""
        v_mul_f32 {v(A[0])}, {inv}, {v(A[0])}
        v_mul_f32 {v(A[1])}, {inv}, {v(A[1])}
        v_fma_f32 {v(A[1])}, -{v(A[0])}, {v(A[0])}, {v(A[1])}
        v_max_f32 {v(A[1])}, 0, {v(A[1])}
        v_add_f32 {v(A[1])}, 0x3727c5ac, {v(A[1])}
        v_rsq_f32 {v(A[2])}, {v(A[1])}
        v_cvt_pk_bf16_f32 {v(A[0])}, -{v(A[0])}, -{v(A[0])}
        v_cmp_eq_u32 vcc, 2, {v(val)}
        v_mul_f32 {v(A[3])}, 0xbfb8aa3b, {v(A[2])}
        v_cndmask_b32 {v(A[1])}, {v(A[1])}, {v(A[3])}, vcc
        v_cmp_eq_u32 vcc, 1, {v(val)}
        v_cndmask_b32 {v(A[1])}, {v(A[1])}, {v(A[2])}, vcc
        v_cmp_eq_u32 vcc, 0, {v(val)}
        v_cndmask_b32 {v(val)}, {v(A[1])}, {v(A[0])}, vcc
        s_branch {done}
        {w7}:
        s_mov_b32 {s(S_EST)}, {WS_RECORDS}
        v_mov_b32 {v(adr)}, 0
        s_or_b32 {s(S_T0)}, {s(S_I)}, {s(S_J)}
        s_cmp_lg_u32 {s(S_T0)}, 0
        s_cbranch_scc1 {done}
        s_mov_b32 {s(S_T1)}, {POISON}
        v_cmp_gt_u32 vcc, 32, {v(V_LANE)}
        v_mov_b32 {v(A[4])}, 0xf149
        """.strip().split("\n")]
        t += [f"v_mov_b32 {v(A[e])}, 0" for e in (0, 1, 2, 3, 5, 6, 7)]
        st = lambda r, off: f"buffer_store_dwordx4 {v(r, 4)}, {v(V_L16)}, {s(SRD_WS, 4)}, {s(S_T1)} offen offset:{off} sc1"
        t += [st(A[0], 0), st(A[0], 3072), f"v_cndmask_b32 {v(A[2])}, {v(A[4])}, 0, vcc", f"v_cndmask_b32 {v(A[4])}, 0, {v(A[4])}, vcc",
              st(A[0], 1024), st(A[4], 2048), f"{done}:", "s_nop 1"]
        return [t]

    def pre_store(self):
        return Op(f"buffer_store_dword {v(V_EVAL)}, {v(V_EADR)}, {s(SRD_WS, 4)}, {s(S_EST)} offen sc1", vm="E")

    SEQ = ([(3 * g + L, k) for g in range(7) for k in range(4) for L in range(3)] + [(None, L) for L in range(5)] +
           [(21 + 2 * g + L, k) for g in range(7) for k in range(4) for L in range(2)])
    NB = [12 * g + 9 for g in range(7)] + [89 + 8 * g + 5 for g in range(7)]

    def g1_wread(self, n):
        u, k = self.SEQ[n]
        slot = 6 if u is None else self.W_SLOT[u]
        off = (slot & 7) * 8192 + k * 2048
        d = WF + 4 * (n & 3)
        return [Op(f"ds_read_b64_tr_b16 {v(d, 2)}, {v(V_WA[slot >> 3])} offset:{off}", lg=f"w{n}a"),
                Op(f"ds_read_b64_tr_b16 {v(d + 2, 2)}, {v(V_WA[slot >> 3])} offset:{off + 512}", lg=f"w{n}")]

    def g1_mfma(self, n):
        u, k = self.SEQ[n]
        if u is None:
            L, b, c, tags = k, V_MU, ("0" if k >= 3 else v(acc(k), 16)), (f"w{n}",)
        else:
            L, g = self.W_UNITS[u]
            b, c, tags = XF + 16 * g + 4 * k, ("0" if (u < 3 and k == 0) else v(acc(L), 16)), (f"w{n}", f"xf{g}{k}")
        return Op(f"v_mfma_f32_32x32x16_bf16 {v(acc(L), 16)}, {v(WF + 4 * (n & 3), 4)}, {v(b, 4)}, {c}", nlg=tags)

    def xf_read(self, g, k):
        return Op(f"ds_read_b128 {v(XF + 16 * g + 4 * k, 4)}, {v(V_XR[k])} offset:{(g & 3) * 16384}", lg=f"xf{g}{k}")

    def g1_barrier(self, G, extra=()):
        if G < 6:
            need = [f"X{G + 1}0", f"X{G + 1}1"] + [f"W{u}" for u in range(3 * G + 3, 3 * G + 6)]
        elif G == 6:
            need = ["A0", "A1", "W21", "W22"]
        else:
            need = [f"W{u}" for u in (9 + 2 * G, 10 + 2 * G) if u < 35]
        return self.barrier(nvm=need + list(extra))

    def g1_range(self, G):
        return range(self.NB[G - 1] if G else 0, self.NB[G])

    def g1_emit(self, a, rng, side, valu, bars):
        k = 0
        for idx, n in enumerate(rng):
            if n not in bars or n != rng[0] or n == 0:
                a(self.g1_mfma(n))
            if n + 3 < len(self.SEQ):
                a(self.g1_wread(n + 3))
            a(side.get(n, []))
            tgt = (len(valu) * (idx + 1) + len(rng) - 1) // len(rng)
            while k < tgt:
                a(valu[k]); k += 1

    @staticmethod
    def spread(side, rng, items, first=1):
        if not items:
            return
        span = len(rng) - first
        for q, it in enumerate(items):
            side.setdefault(rng[first + (q * span) // len(items)], []).append(it)

    def gemm1_pass1(self, a):
        c = self.cfg
        a(f"""
        s_waitcnt lgkmcnt(0)
        s_mul_i32 {s(S_NONCE)}, {s(S_NONCE)}, 0x41c64e6d
        s_add_u32 {s(S_NONCE)}, {s(S_NONCE)}, 0x3039
        """)
        for srd, nrec in ((SRD_WS, WS_RECORDS), (SRD_W2, 1792 * 896), (SRD_WO, 448 * 896), (SRD_OUT, 2048 * 896)):
            a(self.srd(srd, nrec))
        a(self.barrier(nvm=("X00", "X01", "W0", "W1", "W2")))
        a(self.stamp("binit"))
        a(self.xf_read(0, 0))
        for n in range(3):
            a(self.g1_wread(n))
        for k in range(1, 4):
            a(self.xf_read(0, k))
        for G in range(8):
            rng = self.g1_range(G)
            if G == 7:
                rng = range(rng[0], 89)
            side, valu = {}, []
            if 1 <= G <= 6:
                for k in range(4):
                    side.setdefault(rng[(0, 1, 3, 5)[k]], []).append(self.xf_read(G, k))
            dm = list(self.plan[G])
            if G == c.eld:
                dm = dm + self.pre_loads() if c.eldlast else self.pre_loads() + dm
            if c.w2pf == 1 and G < 6:
                dm = self.w2_prefetch(G) + dm
            if G == c.sigp + 1:
                side.setdefault(rng[0], []).append(self.signal_pre())
            if G == c.eiv:
                side.setdefault(rng[0], []).append([Op("", nvm="E3")] + self.pre_cols(f"s_cmp_ge_u32 {s(S_W)}, 4"))
                side.setdefault(rng[-1], []).append(self.pre_cols(f"s_cmp_lg_u32 {s(S_W)}, 4") + self.pre_rows() + [self.pre_store()])
            if G == c.pollp:
                side.setdefault(rng[c.pollpos], []).append(self.poll_issue(TMP + 2, V_POLL, 0, "pp"))
            if G == c.pollp + 1:
                side.setdefault(rng[0], []).append(self.poll_check(TMP + 2, V_POLL, 0, "pp"))
                side[rng[0]].append([f"v_and_b32 {v(TMP + 3)}, 0x1f0, {v(V_L16)}",
                                     Op(f"buffer_load_dwordx4 {v(V_REC, 4)}, {v(TMP + 3)}, {s(SRD_WS, 4)}, {s(S_STAT)} offen sc1", vm="rec")])
                dm = [self.dma(6 + t, SRD_WS, V_L16, S_CS[t], f"A{t}", extra="sc1") for t in range(2)] + dm
            if G == 6:
                valu = self.late_scalars()
            if G == 7:
                side.setdefault(rng[0], []).append([Op(f"v_mov_b32 {v(V_MU + q)}, {v(V_REC)}", nvm="rec") for q in range(4)])
                valu = self.attn_addr()
            self.spread(side, rng, dm)
            self.g1_emit(a, rng, side, valu, self.NB)
            if G < 7:
                a(self.g1_mfma(self.NB[G]))
                a(self.g1_barrier(G, ["E"] if G == c.sigp else []))
                a(self.stamp(f"b{G}"))
        a(self.stamp("p1end"))

    def w2_prefetch(self, G):
        va, l = V_PF, self.lab("pf")
        first = self.cfg.pfrow * 896
        return [[f"s_cmp_lg_u32 {s(S_W)}, {G}", f"s_cbranch_scc1 {l}",
                 f"s_lshr_b32 {s(S_T0)}, s2, 3", f"s_lshl_b32 {s(S_T0)}, {s(S_T0)}, 13",
                 f"s_add_u32 {s(S_T0)}, {s(S_T0)}, {first + G * 32 * 8192}",
                 f"v_lshl_add_u32 {v(va)}, {v(V_LANE)}, 7, {s(S_T0)}",
                 f"v_subrev_u32 {v(va + 1)}, {1792 * 896}, {v(va)}",
                 f"buffer_load_dword {v(va + 2)}, {v(va)}, {s(SRD_W2, 4)}, 0 offen",
                 f"buffer_load_dword {v(va + 3)}, {v(va + 1)}, {s(SRD_WO, 4)}, 0 offen", f"{l}:"]]

    def late_scalars(self):
        wh, wl = S_T0, S_T1
        t = f"""
        s_lshr_b32 {s(wh)}, {s(S_W)}, 1
        s_and_b32 {s(wl)}, {s(S_W)}, 1
        s_lshl_b32 {s(S_T2)}, {s(S_AI)}, 2
        s_add_u32 {s(S_T2)}, {s(S_T2)}, {s(wh)}
        s_mul_i32 {s(S_QOFF)}, {s(S_T2)}, {QKV_TB}
        s_lshl_b32 {s(S_OST)}, {s(S_T2)}, 15
        s_lshl_b32 {s(S_T2)}, {s(S_AH)}, 11
        s_add_u32 {s(S_QOFF)}, {s(S_QOFF)}, {s(S_T2)}
        s_add_u32 {s(S_QOFF)}, {s(S_QOFF)}, {QKV}
        s_lshl_b32 {s(S_T2)}, {s(wl)}, 10
        s_add_u32 {s(S_KOFF[2])}, {s(S_QOFF)}, {s(S_T2)}
        s_add_u32 {s(S_KOFF[2])}, {s(S_KOFF[2])}, {64 * 512}
        s_add_u32 {s(S_VOFF[2])}, {s(S_KOFF[2])}, {64 * 512}
        s_and_b32 {s(S_T3)}, {s(S_AH)}, 1
        s_lshl_b32 {s(S_T0)}, {s(S_T3)}, 11
        s_add_u32 {s(S_T2)}, {s(S_T2)}, {s(S_T0)}
        s_add_u32 {s(S_T2)}, {s(S_T2)}, {POISON}
        s_sub_u32 {s(S_KOFF[1])}, {s(S_KOFF[2])}, {4 * QKV_TB}
        s_sub_u32 {s(S_VOFF[1])}, {s(S_VOFF[2])}, {4 * QKV_TB}
        s_sub_u32 {s(S_KOFF[0])}, {s(S_KOFF[2])}, {8 * QKV_TB}
        s_sub_u32 {s(S_VOFF[0])}, {s(S_VOFF[2])}, {8 * QKV_TB}
        s_cmp_ge_u32 {s(S_AI)}, 1 | s_cselect_b32 {s(S_KOFF[1])}, {s(S_KOFF[1])}, {s(S_T2)} | s_cselect_b32 {s(S_VOFF[1])}, {s(S_VOFF[1])}, {s(S_T2)}
        s_cmp_ge_u32 {s(S_AI)}, 2 | s_cselect_b32 {s(S_KOFF[0])}, {s(S_KOFF[0])}, {s(S_T2)} | s_cselect_b32 {s(S_VOFF[0])}, {s(S_VOFF[0])}, {s(S_T2)}
        s_lshl_b32 {s(S_T2)}, {s(wl)}, 8
        s_add_u32 {s(S_QOFF)}, {s(S_QOFF)}, {s(S_T2)}
        s_add_u32 {s(S_OST)}, {s(S_OST)}, {s(S_T2)}
        s_lshl_b32 {s(S_T2)}, {s(S_T3)}, 14
        s_add_u32 {s(S_OST)}, {s(S_OST)}, {s(S_T2)}
        s_lshr_b32 {s(S_T2)}, {s(S_AH)}, 1
        s_lshl_b32 {s(S_T2)}, {s(S_T2)}, 10
        s_add_u32 {s(S_OST)}, {s(S_OST)}, {s(S_T2)}
        s_add_u32 {s(S_OST)}, {s(S_OST)}, {OWS}
        s_lshl_b32 {s(S_OFLAG)}, {s(S_AI)}, 8
        s_lshl_b32 {s(S_T2)}, {s(S_AH)}, 2
        s_add_u32 {s(S_OFLAG)}, {s(S_OFLAG)}, {s(S_T2)}
        s_add_u32 {s(S_OFLAG)}, {s(S_OFLAG)}, {3 * 4096}
        s_cmp_eq_u32 {s(S_GN)}, 7 | s_cselect_b32 {s(SRD_W2 + 2)}, 0, {s(SRD_W2 + 2)}
        s_mov_b32 {s(S_MA)}, 0 | s_not_b32 {s(S_MA + 1)}, {s(S_MB)}
        s_and_b32 {s(S_KQ)}, {s(S_W)}, 3
        s_lshr_b32 {s(S_T0)}, {s(S_W)}, 2
        s_lshl_b32 {s(S_T1)}, {s(S_GM)}, 1
        s_add_u32 {s(S_T1)}, {s(S_T1)}, {s(S_T0)}
        s_mul_i32 {s(S_HLD)}, {s(S_T1)}, {H_TB}
        s_mul_i32 {s(S_T2)}, {s(S_KQ)}, 28672
        s_add_u32 {s(S_HLD)}, {s(S_HLD)}, {s(S_T2)}
        s_add_u32 {s(S_HLD)}, {s(S_HLD)}, {HWS}
        s_lshl_b32 {s(S_OLD)}, {s(S_T1)}, 15
        s_lshl_b32 {s(S_T2)}, {s(S_KQ)}, 13
        s_add_u32 {s(S_OLD)}, {s(S_OLD)}, {s(S_T2)}
        s_add_u32 {s(S_OLD)}, {s(S_OLD)}, {OWS}
        s_mul_i32 {s(S_XOFF)}, {s(S_T1)}, {32 * 896}
        s_lshl_b32 {s(S_T2)}, {s(S_GN)}, 7
        s_add_u32 {s(S_XOFF)}, {s(S_XOFF)}, {s(S_T2)}
        s_lshl_b32 {s(S_T2)}, {s(S_KQ)}, 5
        s_add_u32 {s(S_XOFF)}, {s(S_XOFF)}, {s(S_T2)}
        """
        return [[x.strip() for x in l.split("|")] for l in t.strip().split("\n")]

    def attn_addr(self):
        g, l15, t0, t1, t2 = TMP + 4, TMP + 5, TMP + 6, TMP + 7, TMP + 8
        t = f"""
        v_lshrrev_b32 {v(g)}, 4, {v(V_LANE)}
        v_and_b32 {v(l15)}, 15, {v(V_LANE)}
        s_lshr_b32 {s(S_T0)}, {s(S_W)}, 1 | s_lshl_b32 {s(S_T0)}, {s(S_T0)}, 11 | s_and_b32 {s(S_T1)}, {s(S_W)}, 1 | s_lshl_b32 {s(S_T2)}, {s(S_T1)}, 8
        s_add_u32 {s(S_T0)}, {s(S_T0)}, {s(S_T2)} | s_add_u32 {s(S_T0)}, {s(S_T0)}, {14 * 8192} | s_mul_i32 {s(S_T1)}, {s(S_T1)}, 1536 | s_add_u32 {s(S_T1)}, {s(S_T1)}, 256
        v_lshlrev_b32 {v(t0)}, 4, {v(l15)}
        v_lshl_add_u32 {v(V_QLD)}, {v(g)}, 9, {v(t0)}
        v_add_u32 {v(V_KE)}, {s(S_T0)}, {v(V_QLD)}
        v_add_u32 {v(V_KO)}, {s(S_T1)}, {v(V_KE)}
        v_lshrrev_b32 {v(t1)}, 5, {v(V_LANE)}
        v_lshlrev_b32 {v(t2)}, 7, {v(t1)}
        v_xor_b32 {v(V_VD)}, {v(t2)}, {v(V_L16)}
        v_lshl_add_u32 {v(t0)}, {v(t1)}, 13, {v(t0)}
        v_and_b32 {v(t1)}, 1, {v(g)}
        v_lshl_add_u32 {v(V_OSTV)}, {v(t1)}, 9, {v(t0)}
        v_bfe_u32 {v(t0)}, {v(V_LANE)}, 1, 1
        v_lshrrev_b32 {v(t1)}, 2, {v(V_LANE)}
        v_lshlrev_b32 {v(t2)}, 3, {v(t0)}
        v_xor_b32 {v(t1)}, {v(t1)}, {v(t2)}
        v_lshlrev_b32 {v(t1)}, 4, {v(t1)}
        v_lshl_add_u32 {v(t1)}, {v(t0)}, 9, {v(t1)}
        v_and_b32 {v(t0)}, 1, {v(V_LANE)}
        v_lshl_add_u32 {v(t1)}, {v(t0)}, 3, {v(t1)}
        s_add_u32 {s(S_T0)}, {s(S_T0)}, {3 * 8192} | v_add_u32 {v(V_VE)}, {s(S_T0)}, {v(t1)}
        v_add_u32 {v(V_VO)}, {s(S_T1)}, {v(V_VE)}
        v_min_u32 {v(t0)}, 2, {v(g)}
        s_sub_u32 {s(S_T2)}, {s(S_AI)}, 2 | v_add_u32 {v(t0)}, {s(S_T2)}, {v(t0)}
        v_max_i32 {v(t0)}, 0, {v(t0)}
        v_lshlrev_b32 {v(t0)}, 8, {v(t0)}
        v_lshl_add_u32 {v(V_POLL)}, {v(l15)}, 2, {v(t0)}
        """
        return [[x.strip() for x in l.split("|")] for l in t.strip().split("\n")]

    def attn_masks(self):
        t0, t1 = XF + 4, XF + 5
        ops = [f"v_lshrrev_b32 {v(t0)}, 2, {v(V_LANE)}", f"v_and_b32 {v(t0)}, 12, {v(t0)}",
               f"v_and_b32 {v(t1)}, 15, {v(V_LANE)}", f"v_sub_u32 {v(t0)}, {v(t1)}, {v(t0)}",
               f"v_mov_b32 {v(t1)}, {NEG_BIG}"]
        for r in range(4):
            ops.append([f"v_cmp_gt_i32 vcc, {r}, {v(t0)}",
                        f"v_cndmask_b32 {v(sblk(0) + r)}, {v(t1)}, 0, vcc",
                        f"v_cndmask_b32 {v(sblk(16) + r)}, 0, {v(t1)}, vcc"])
        return ops

    def epi_qkv(self, L, k, tag):
        A = acc(L)
        P = TMP + 8 * (k & 1)
        vc = TMP + 16
        ops = [Op(f"v_mov_b32 {v(vc)}, {s(S_QC[k])}")]
        for q in range(8):
            ops.append(Op(f"v_mul_f32 {v(A + 2 * q)}, {v(V_REC + 1)}, {v(A + 2 * q)}"))
            ops.append(Op(f"v_mul_f32 {v(A + 2 * q + 1)}, {v(V_REC + 1)}, {v(A + 2 * q + 1)}"))
        for q in range(8):
            ops.append(Op(f"v_cvt_pk_bf16_f32 {v(P + q)}, {v(A + 2 * q)}, {v(A + 2 * q + 1)}"))
        ops += [Op(f"v_cndmask_b32 {v(P)}, {v(P)}, {v(vc)}, {s(S_MB, 2)}"),
                Op(f"v_cndmask_b32 {v(P + 1)}, {v(P + 1)}, 0, {s(S_MB, 2)}"),
                Op(f"v_cndmask_b32 {v(P + 6)}, {v(P + 6)}, {v(vc)}, {s(S_MA, 2)}"),
                Op(f"v_cndmask_b32 {v(P + 7)}, {v(P + 7)}, 0, {s(S_MA, 2)}")]
        for h2 in range(2):
            p = P + 4 * h2
            ops.append(Op(f"v_permlane32_swap_b32 {v(p)}, {v(p + 2)}"))
            ops.append(Op(f"v_permlane32_swap_b32 {v(p + 1)}, {v(p + 3)}"))
        for h2 in range(2):
            ops.append(Op(f"buffer_store_dwordx4 {v(P + 4 * h2, 4)}, {v(V_L16)}, {s(SRD_WS, 4)}, {s(S_QST[k])} offen offset:{1024 * h2} sc1",
                          vm=f"{tag}{h2}"))
        return ops

    def epi_h(self, Lg, Lu, tag):
        G, U = acc(Lg), acc(Lu)
        ops = []
        for b in range(4):
            e = TMP + 16 + 4 * (b & 1)
            out = TMP + 8 * (b >> 1)
            r = range(4 * b, 4 * b + 4)
            ops += [Op(f"v_mul_f32 {v(e + q)}, {v(V_REC + 2)}, {v(G + i)}") for q, i in enumerate(r)]
            ops += [Op(f"v_exp_f32 {v(e + q)}, {v(e + q)}") for q in range(4)]
            ops += [Op(f"v_mul_f32 {v(G + i)}, {v(G + i)}, {v(U + i)}") for i in r]
            ops += [Op(f"v_fma_f32 {v(e + q)}, {v(e + q)}, {v(V_REC + 3)}, {v(V_REC + 3)}") for q in range(4)]
            ops += [Op(f"v_rcp_f32 {v(e + q)}, {v(e + q)}") for q in range(4)]
            ops += [Op(f"v_mul_f32 {v(G + i)}, {v(G + i)}, {v(e + q)}") for q, i in enumerate(r)]
            o = out + 2 * (b & 1)
            ops += [Op(f"v_cvt_pk_bf16_f32 {v(o)}, {v(G + 4 * b)}, {v(G + 4 * b + 1)}"),
                    Op(f"v_cvt_pk_bf16_f32 {v(o + 1)}, {v(G + 4 * b + 2)}, {v(G + 4 * b + 3)}")]
            if b & 1:
                va = V_L16 if b == 1 else V_H2
                ops.append(Op(f"buffer_store_dwordx4 {v(out, 4)}, {v(va)}, {s(SRD_WS, 4)}, {s(S_HA)} offen sc1", vm=f"{tag}{b >> 1}"))
        return ops

    def gemm1_pass2(self, a, typec):
        c = self.cfg
        if typec:
            epi = self.epi_qkv(0, 0, "q") + self.epi_qkv(1, 1, "q") + self.epi_qkv(2, 2, "q") + self.attn_masks()
            n = len(epi) - 9
            cut = [0, 30, 75, n, n, len(epi), len(epi), len(epi), len(epi)]
            if c.cfast == 1:
                a(epi[:n])
                cut = [n, n, len(epi)] + [len(epi)] * 6
            elif c.cfast == 2:
                cut = [0, 70, n, len(epi)] + [len(epi)] * 5
        else:
            epi = self.epi_qkv(0, 0, "q") + self.epi_h(1, 2, "ha") + self.attn_masks()
            cut = [0, 18, 40, 62, 84, 106, 128, len(epi) - 3, len(epi)]
        for G in range(7, 15):
            lo = 89 if G == 7 else self.NB[G - 1]
            hi = self.NB[G] if G < 14 else len(self.SEQ)
            rng = range(lo, hi)
            side = {}
            dm = self.plan[G] if 7 < G < 14 else []
            valu = epi[cut[G - 7]:cut[G - 6]]
            if G == 7:
                valu = [[]] * 2 + valu
            if G == c.sig0 + 1:
                side.setdefault(rng[0], []).append(self.signal_g1(0, XF + 1))
            if G == c.poll0:
                side.setdefault(rng[0], []).append(self.poll_issue(XF, V_POLL, 0, "p0"))
            self.spread(side, rng, dm, 0 if G == 7 else 1)
            self.g1_emit(a, rng, side, valu, self.NB)
            if G < 14:
                a(self.g1_mfma(self.NB[G]))
                a(self.g1_barrier(G, ["q1"] if G == c.sig0 else []))
                a(self.stamp(f"b{G}"))

    def h_load(self, gr):
        ops = []
        if gr and gr % 4 == 0:
            ops.append(Op(f"s_add_u32 {s(S_HLD)}, {s(S_HLD)}, 4096"))
        ops.append(Op(f"buffer_load_dwordx4 {v(XF + 4 * gr, 4)}, {v(V_L16)}, {s(SRD_WS, 4)}, {s(S_HLD)} offen offset:{1024 * (gr % 4)} sc1",
                      vm=f"h{gr}"))
        return ops

    def k_read(self, b):
        return Op(f"ds_read_b128 {v(WF + 4 * (b & 3), 4)}, {v(V_KO if b & 1 else V_KE)} offset:{(b >> 1) * 2048}", lg=f"k{b}")

    def v_read(self, m):
        p, dh = m >> 1, m & 1
        d = WF + 4 * (m & 3)
        ops = [Op(f"ds_read_b64_tr_b16 {v(d, 2)}, {v(V_VE)} offset:{p * 2048 + dh * 1024}", lg=f"v{m}" if p == 8 else f"v{m}a")]
        if p < 8:
            ops.append(Op(f"ds_read_b64_tr_b16 {v(d + 2, 2)}, {v(V_VO)} offset:{p * 2048 + dh * 1024}", lg=f"v{m}"))
        return ops

    def pv_mfma(self, m):
        p, dh = m >> 1, m & 1
        o = v(OACC + 4 * dh, 4)
        if p < 8:
            return Op(f"v_mfma_f32_16x16x32_bf16 {o}, {v(WF + 4 * (m & 3), 4)}, {v(sblk(2 * p), 4)}, {'0' if p == 0 else o}", nlg=f"v{m}")
        return Op(f"v_mfma_f32_16x16x16_bf16 {o}, {v(WF + 4 * (m & 3), 2)}, {v(S16, 2)}, {o}", nlg=f"v{m}")

    def attention_entry(self, a):
        a(self.stamp("p2end"))
        a(self.poll_check(XF, V_POLL, 0, "p0"))
        a(self.stamp("poll0"))
        l = self.lab("epoch")
        a(f"""
        s_or_b32 {s(S_T0)}, s2, {s(S_W)}
        s_cmp_lg_u32 {s(S_T0)}, 0
        s_cbranch_scc1 {l}
        v_mov_b32 {v(XF + 1)}, {s(S_NONCE)}
        s_mov_b32 {s(S_T0)}, {EPOCH}
        s_mov_b64 exec, 1
        buffer_store_dword {v(XF + 1)}, off, {s(SRD_WS, 4)}, {s(S_T0)} sc1
        s_mov_b64 exec, -1
        {l}:
        s_add_u32 {s(S_HA)}, {s(S_HA)}, {12 * 1024}
        """)
        req = [[Op(f"buffer_load_dwordx4 {v(V_Q, 4)}, {v(V_QLD)}, {s(SRD_WS, 4)}, {s(S_QOFF)} offen sc1", vm="Q")]]
        req += [self.dma(14 + t, SRD_WS, V_L16, S_KOFF[t], f"K{t}", extra="sc1") for t in range(3)]
        req += [self.dma(17 + t, SRD_WS, V_VD, S_VOFF[t], f"V{t}", extra="sc1") for t in range(3)]
        req += self.plan["rest"] + [self.bdma(10), self.bdma(11)]
        epi = self.epi_h(3, 4, "hb")
        a(req[:2])
        a(interleave([[o] for o in epi], req[2:], 0, 50))
        a(self.stamp("hbend"))
        a(f"""
        v_and_b32 {v(V_GP)}, 15, {v(V_LANE)}
        v_lshlrev_b32 {v(V_GP)}, 2, {v(V_GP)}
        s_lshr_b32 {s(S_T0)}, {s(S_GM)}, 1
        s_lshl_b32 {s(S_T0)}, {s(S_T0)}, 8
        s_add_u32 {s(S_T0)}, {s(S_T0)}, {2 * 4096}
        v_add_u32 {v(V_GP)}, {s(S_T0)}, {v(V_GP)}
        """)

    def attention(self, a):
        c = self.cfg
        a(self.barrier(nvm=("Q", "K0", "K1", "K2", "V0", "V1", "V2")))
        a(self.stamp("abar"))
        for b in range(3):
            a(self.k_read(b))
        late = [self.bdma(12), self.bdma(13)]
        for b in range(17):
            cin = v(sblk(b), 4) if b in (0, 16) else "0"
            a(Op(f"v_mfma_f32_16x16x32_bf16 {v(sblk(b), 4)}, {v(WF + 4 * (b & 3), 4)}, {v(V_Q, 4)}, {cin}", nlg=f"k{b}"))
            if b + 3 < 17:
                a(self.k_read(b + 3))
            if b in (2, 8):
                a(late.pop(0))
        a(self.stamp("qk"))
        for m in range(3):
            a(self.v_read(m))
        m0, m1 = V_PT, V_PT + 1
        sc = [sblk(b) + r for b in range(17) for r in range(4)]
        a(f"v_max3_f32 {v(m0)}, {v(sc[0])}, {v(sc[1])}, {v(sc[2])}")
        a(f"v_max3_f32 {v(m1)}, {v(sc[3])}, {v(sc[4])}, {v(sc[5])}")
        for q in range(31):
            mm = m0 if q % 2 == 0 else m1
            a(f"v_max3_f32 {v(mm)}, {v(sc[6 + 2 * q])}, {v(sc[7 + 2 * q])}, {v(mm)}")
        a(self.stamp("max"))
        a(self.barrier(nvm=("hb0", "hb1")))
        a(self.stamp("hbbar"))
        a(self.signal_g1(2, V_PT + 2))
        a(f"""
        v_max_f32 {v(m0)}, {v(m0)}, {v(m1)}
        v_mov_b32 {v(m1)}, {v(m0)}
        v_permlane32_swap_b32 {v(m0)}, {v(m1)}
        v_max_f32 {v(m0)}, {v(m0)}, {v(m1)}
        v_mov_b32 {v(m1)}, {v(m0)}
        v_permlane16_swap_b32 {v(m0)}, {v(m1)}
        v_max_f32 {v(m0)}, {v(m0)}, {v(m1)}
        s_mov_b32 {s(S_T0)}, {C_EXP}
        v_mul_f32 {v(m0)}, -{v(m0)}, {s(S_T0)}
        """)
        hl = [self.h_load(g) for g in range(28)]
        for p in range(9):
            r = list(range(sblk(2 * p), sblk(2 * p) + (8 if p < 8 else 4)))
            ops = [f"v_fma_f32 {v(x)}, {v(x)}, {s(S_T0)}, {v(m0)}" for x in r]
            ops += [f"v_exp_f32 {v(x)}, {v(x)}" for x in r]
            ops += [f"v_cvt_pk_bf16_f32 {v(r[0] + q)}, {v(r[2 * q])}, {v(r[2 * q + 1])}" for q in range(len(r) // 2)]
            side = []
            if p >= 1:
                for m in (2 * p - 2, 2 * p - 1):
                    side.append([self.pv_mfma(m)] + (self.v_read(m + 3) if m + 3 < 18 else []))
            if p == c.hbpos - 1:
                side.append(self.poll_issue(V_PT + 2, V_GP, 0, "ph"))
            if p == c.hbpos:
                side.append(self.stamp("hp0") + self.poll_check(V_PT + 2, V_GP, 0, "ph") + self.stamp("hp1"))
            if p >= c.hbpos and c.stop > 2:
                k = (28 + 8 - c.hbpos) // (9 - c.hbpos)
                side += hl[:k]
                hl = hl[k:]
            a(interleave([[o] for o in ops], side, 2))
        a(self.stamp("exp"))
        a(self.pv_mfma(16))
        a(self.pv_mfma(17))
        if c.stop > 2:
            a(hl)
        le, lj = self.lab("even"), self.lab("den")
        t0, t1 = V_PT, V_PT + 1
        a(f"""
        s_bitcmp0_b32 {s(S_AH)}, 0
        s_cbranch_scc1 {le}
        s_nop 7
        v_mov_b32 {v(t0)}, {v(OACC)}
        v_mov_b32 {v(t1)}, {v(OACC)}
        s_mov_b64 vcc, 0xffff
        v_permlane32_swap_b32 {v(t0)}, {v(t1)}
        v_cndmask_b32 {v(OACC)}, {v(OACC)}, 0, vcc
        v_mov_b32 {v(t1)}, {v(t0)}
        s_nop 1
        v_permlane16_swap_b32 {v(t0)}, {v(t1)}
        s_branch {lj}
        {le}:
        s_nop 7
        v_mov_b32 {v(t0)}, {v(OACC + 4)}
        v_mov_b32 {v(t1)}, {v(OACC + 4)}
        s_mov_b32 vcc_lo, 0
        s_mov_b32 vcc_hi, 0xffff0000
        v_permlane32_swap_b32 {v(t1)}, {v(t0)}
        v_cndmask_b32 {v(OACC + 4)}, {v(OACC + 4)}, 0, vcc
        v_mov_b32 {v(t1)}, {v(t0)}
        s_nop 1
        v_permlane16_swap_b32 {v(t1)}, {v(t0)}
        {lj}:
        s_nop 1
        v_rcp_f32 {v(t0)}, {v(t0)}
        """)
        for q in range(8):
            a(f"v_mul_f32 {v(OACC + q)}, {v(t0)}, {v(OACC + q)}")
        for q in range(4):
            a(f"v_cvt_pk_bf16_f32 {v(OACC + q)}, {v(OACC + 2 * q)}, {v(OACC + 2 * q + 1)}")
        a(f"v_permlane32_swap_b32 {v(OACC)}, {v(OACC + 2)}\nv_permlane32_swap_b32 {v(OACC + 1)}, {v(OACC + 3)}")
        a(Op(f"buffer_store_dwordx4 {v(OACC, 4)}, {v(V_OSTV)}, {s(SRD_WS, 4)}, {s(S_OST)} offen sc1", vm="o"))
        a(self.stamp("aend"))

    def g3_addr(self):
        hh, t2, t3, t4 = TMP + 16, TMP + 17, TMP + 18, TMP + 19
        t = f"""
        v_lshrrev_b32 {v(hh)}, 5, {v(V_LANE)}
        v_bfe_u32 {v(t2)}, {v(V_LANE)}, 2, 2
        v_lshl_add_u32 {v(t3)}, {v(hh)}, 2, {v(t2)}
        s_lshl_b32 {s(S_T0)}, {s(S_KQ)}, 4
        v_add_u32 {v(t3)}, {s(S_T0)}, {v(t3)}
        v_lshlrev_b32 {v(t3)}, 7, {v(t3)}
        v_lshrrev_b32 {v(t2)}, 1, {v(t2)}
        v_lshl_add_u32 {v(t3)}, {v(t2)}, 6, {v(t3)}
        v_bfe_u32 {v(t2)}, {v(V_LANE)}, 4, 1
        v_lshl_add_u32 {v(t3)}, {v(t2)}, 5, {v(t3)}
        v_and_b32 {v(t2)}, 3, {v(V_LANE)}
        v_lshl_add_u32 {v(V_GA[0][0])}, {v(t2)}, 3, {v(t3)}
        v_xor_b32 {v(V_GA[0][1])}, 64, {v(V_GA[0][0])}
        v_add_u32 {v(V_GA[1][0])}, 0x10000, {v(V_GA[0][0])}
        v_add_u32 {v(V_GA[1][1])}, 0x10000, {v(V_GA[0][1])}
        v_add_u32 {v(V_GA[2][0])}, 0x20000, {v(V_GA[0][0])}
        v_add_u32 {v(V_GA[2][1])}, 0x20000, {v(V_GA[0][1])}
        """
        return [l.strip() for l in t.strip().split("\n")]

    def g3_addr2(self):
        hh, t2 = TMP + 16, TMP + 17
        t = f"""
        s_lshr_b32 {s(S_T0)}, {s(S_W)}, 2
        s_lshl_b32 {s(S_T0)}, {s(S_T0)}, 13
        v_add_u32 {v(V_EW[0])}, {s(S_T0)}, {v(V_L16)}
        v_add_u32 {v(V_EW[1])}, 0x20000, {v(V_EW[0])}
        s_lshl_b32 {s(S_T0)}, {s(S_KQ)}, 11
        v_add_u32 {v(V_ER[0])}, {s(S_T0)}, {v(V_EW[0])}
        v_add_u32 {v(V_ER[1])}, {s(S_T0)}, {v(V_EW[1])}
        v_and_b32 {v(t2)}, 31, {v(V_LANE)}
        v_mul_u32_u24 {v(t2)}, 896, {v(t2)}
        v_lshl_add_u32 {v(V_XO)}, {v(hh)}, 4, {v(t2)}
        """
        return [l.strip() for l in t.strip().split("\n")]

    def g3_read(self, n):
        gi, ch = n >> 1, n & 1
        slot = self.B_SLOT[gi] if gi < 28 else self.WO_SLOT[gi - 28]
        off = (slot & 7) * 8192
        d = WF + 4 * (n & 3)
        va = V_GA[slot >> 3][ch] if gi < 28 else V_GA[2][ch] if slot >> 3 else V_GA[0][ch]
        return [Op(f"ds_read_b64_tr_b16 {v(d, 2)}, {v(va)} offset:{off}", lg=f"g{n}a"),
                Op(f"ds_read_b64_tr_b16 {v(d + 2, 2)}, {v(va)} offset:{off + 1024}", lg=f"g{n}")]

    def g3_mfma(self, n):
        gi, ch = n >> 1, n & 1
        d = (FACC if gi < 28 else SACC) + 16 * ch
        b = XF + 4 * (gi if gi < 28 else gi - 28)
        c = "0" if gi in (0, 28) else v(d, 16)
        return Op(f"v_mfma_f32_32x32x16_bf16 {v(d, 16)}, {v(WF + 4 * (n & 3), 4)}, {v(b, 4)}, {c}",
                  nlg=f"g{n}", nvm=f"h{gi}" if gi < 28 else f"o{gi - 28}")

    def area_addr(self, regs, t, off):
        if t < 2:
            return regs[1], self.AREA[t] - 0x20000 + off
        return regs[0], self.AREA[t] + off

    def exchange_write(self, a, base):
        done = self.lab("xw")
        labs = [self.lab("xq") for _ in range(4)]
        a("s_nop 7\ns_nop 3")
        for kq in range(4):
            if kq < 3:
                a(f"s_cmp_lg_u32 {s(S_KQ)}, {kq}\ns_cbranch_scc1 {labs[kq]}")
            for Q in range(4):
                if Q == kq:
                    continue
                for hf in range(2):
                    r, off = self.area_addr(V_EW, (kq - Q - 1) % 4, Q * 2048 + hf * 1024)
                    a(f"ds_write_b128 {v(r)}, {v(base + 8 * Q + 4 * hf, 4)} offset:{off}")
            for q in range(8):
                a(f"v_mov_b32 {v(V_SUM + q)}, {v(base + 8 * kq + q)}")
            if kq < 3:
                a(f"s_branch {done}\n{labs[kq]}:")
        a.label(done)

    def exchange_read(self):
        ops = []
        for t in range(3):
            for hf in range(2):
                r, off = self.area_addr(V_ER, t, hf * 1024)
                ops.append(Op(f"ds_read_b128 {v(V_RD + 8 * t + 4 * hf, 4)}, {v(r)} offset:{off}", lg=f"e{t}{hf}"))
        for t in range(3):
            for q in range(8):
                ops.append(Op(f"v_add_f32 {v(V_SUM + q)}, {v(V_SUM + q)}, {v(V_RD + 8 * t + q)}", nlg=f"e{t}{q >> 2}"))
        return ops

    def gemm3(self, a):
        c = self.cfg
        a(self.g3_addr())
        a(self.barrier(nvm=("B0", "B1", "B2", "B3"), nlg=()))
        a(self.stamp("ginit"))
        for n in range(3):
            a(self.g3_read(n))
        issue = {0: [self.bdma(b) for b in range(14, 18)], 1: [self.bdma(b) for b in range(18, 20)],
                 2: [self.bdma(b) for b in range(20, 24)], 3: [self.bdma(b) for b in range(24, 28)],
                 4: [self.wodma(b) for b in range(4)], 5: [self.wodma(b) for b in range(4, 8)]}
        nb = [8 * st + 5 for st in range(7)]
        for G in range(8):
            rng = range(nb[G - 1] if G else 0, nb[G] if G < 7 else 56)
            side = {}
            if G == 1:
                side[rng[0]] = [self.signal([], S_OFLAG, V_SUM)]
            if G == c.pollo:
                side.setdefault(rng[0], []).append(self.poll_issue(V_SUM + 1, V_GP, "s" + str(S_T1), "po"))
            if G == c.pollo - 1:
                side.setdefault(rng[0], []).append(f"s_movk_i32 {s(S_T1)}, 4096")
            if G == 2:
                for q, o in enumerate(self.g3_addr2()):
                    side.setdefault(rng[1 + q // 2], []).append(o)
            if G == 6:
                side.setdefault(rng[1], []).append(
                    Op(f"buffer_load_dwordx4 {v(V_XRES, 4)}, {v(V_XO)}, {s(SRD_X, 4)}, {s(S_XOFF)} offen", vm="xr"))
            self.spread(side, rng, issue.get(G, []), 0 if G == 0 else 1)
            for n in rng:
                if n not in nb or n != rng[0]:
                    a(self.g3_mfma(n))
                if n + 3 < 56:
                    a(self.g3_read(n + 3))
                a(side.get(n, []))
            if G < 7:
                a(self.g3_mfma(nb[G]))
                if G < 6:
                    a(self.barrier(nvm=[f"B{b}" for b in range(4 * G + 4, 4 * G + 8)] + (["o"] if G == 0 else [])))
                else:
                    a(self.barrier())
                a(self.stamp(f"g{G}"))
        a(self.stamp("fend"))
        a(self.poll_check(V_SUM + 1, V_GP, "s" + str(S_T1), "po"))
        a(self.stamp("opoll"))
        for g in range(8):
            if g == 4:
                a(f"s_add_u32 {s(S_OLD)}, {s(S_OLD)}, 4096")
            a(Op(f"buffer_load_dwordx4 {v(XF + 4 * g, 4)}, {v(V_L16)}, {s(SRD_WS, 4)}, {s(S_OLD)} offen offset:{1024 * (g % 4)} sc1", vm=f"o{g}"))
        self.exchange_write(a, FACC)
        a(f"""
        s_lshr_b32 {s(S_T0)}, {s(S_KQ)}, 1
        s_lshl_b32 {s(S_T0)}, {s(S_T0)}, 10
        v_subrev_u32 {v(V_GA[0][0])}, {s(S_T0)}, {v(V_GA[0][0])}
        v_subrev_u32 {v(V_GA[0][1])}, {s(S_T0)}, {v(V_GA[0][1])}
        v_subrev_u32 {v(V_GA[2][0])}, {s(S_T0)}, {v(V_GA[1][0])}
        v_subrev_u32 {v(V_GA[2][1])}, {s(S_T0)}, {v(V_GA[1][1])}
        """)
        a.drain(vm=False)
        a(self.barrier(nvm=[f"WO{b}" for b in range(8)]))
        a(self.stamp("fx"))
        for n in range(56, 59):
            a(self.g3_read(n))
        F = V_SUM + 8
        e = TMP + 16
        valu = self.exchange_read()
        valu += [Op(f"v_mul_f32 {v(e + q)}, 0xbfb8aa3b, {v(V_SUM + q)}") for q in range(8)]
        valu += [Op(f"v_exp_f32 {v(e + q)}, {v(e + q)}") for q in range(8)]
        valu += [Op(f"v_add_f32 {v(e + q)}, 1.0, {v(e + q)}") for q in range(8)]
        valu += [Op(f"v_rcp_f32 {v(e + q)}, {v(e + q)}") for q in range(8)]
        valu += [Op(f"v_mul_f32 {v(F + q)}, {v(V_SUM + q)}, {v(e + q)}") for q in range(8)]
        for q in range(4):
            valu += [Op(f"v_lshlrev_b32 {v(e + 2 * q)}, 16, {v(V_XRES + q)}", nvm="xr"),
                     Op(f"v_and_b32 {v(e + 2 * q + 1)}, 0xffff0000, {v(V_XRES + q)}")]
        a(valu[:30])
        main = [[self.g3_mfma(n)] + (self.g3_read(n + 3) if n + 3 < 72 else []) for n in range(56, 72)]
        a(interleave(main, valu[30:], 0, 14))
        a(self.stamp("send"))
        a(self.barrier())
        self.exchange_write(a, SACC)
        a.drain(vm=False)
        a(self.barrier())
        a(self.exchange_read())
        for q in range(8):
            a(f"v_mul_f32 {v(V_SUM + q)}, {v(V_SUM + q)}, {v(F + q)}")
        for q in range(4):
            a(f"v_permlane32_swap_b32 {v(V_SUM + q)}, {v(V_SUM + 4 + q)}")
        for q in range(8):
            a(f"v_add_f32 {v(V_SUM + q)}, {v(V_SUM + q)}, {v(e + q)}")
        for q in range(4):
            a(f"v_cvt_pk_bf16_f32 {v(V_SUM + q)}, {v(V_SUM + 2 * q)}, {v(V_SUM + 2 * q + 1)}")
        a(Op(f"buffer_store_dwordx4 {v(V_SUM, 4)}, {v(V_XO)}, {s(SRD_OUT, 4)}, {s(S_XOFF)} offen", vm="out"))

    def finish(self, a):
        if self.cfg.prof == 2:
            a(f"""
            s_memtime s[98:99]
            s_memrealtime s[34:35]
            s_load_dwordx2 {s(SRD_W2, 2)}, s[0:1], 64
            s_waitcnt lgkmcnt(0)
            s_and_b32 {s(SRD_W2 + 1)}, {s(SRD_W2 + 1)}, 0xffff
            s_mov_b32 {s(SRD_W2 + 2)}, 64
            s_lshl_b32 {s(S_T0)}, {s(S_W)}, 8
            s_add_u32 {s(S_T0)}, {s(S_T0)}, s2
            s_cmp_eq_u32 {s(S_T0)}, {self.cfg.dbgwg}
            s_cselect_b32 {s(S_T1)}, 32, 64
            s_cmp_eq_u32 {s(S_T0)}, 0
            s_cselect_b32 {s(S_T0)}, 0, {s(S_T1)}
            s_sub_u32 s34, s34, {s(S_PROF + 14)}
            s_mov_b64 exec, 1
            """)
            for k, r in enumerate([34] + [S_PROF + 2 * k for k in range(1, 7)] + [98]):
                if k:
                    a(f"s_sub_u32 s{r}, s{r}, {s(S_PROF)}")
                a(f"v_mov_b32 {v(TMP)}, s{r}")
                a(f"buffer_store_dword {v(TMP)}, off, {s(SRD_W2, 4)}, {s(S_T0)} offset:{4 * k}")
                a("s_nop 1")
        elif self.cfg.prof:
            a(f"{self.clock()} s[98:99]\ns_memrealtime s[34:35]\ns_waitcnt lgkmcnt(0)")
            a(f"""
            s_lshl_b32 {s(S_T0)}, s2, 3
            s_add_u32 {s(S_T0)}, {s(S_T0)}, {s(S_W)}
            s_lshl_b32 {s(S_T0)}, {s(S_T0)}, 6
            s_add_u32 {s(S_T0)}, {s(S_T0)}, {PROF}
            s_mov_b64 exec, 1
            """)
            for k, r in enumerate([S_PROF + 2 * k for k in range(7)] + [98, S_PROF + 14, 34]):
                a(f"v_mov_b32 {v(TMP)}, s{r}")
                a(f"buffer_store_dword {v(TMP)}, off, {s(SRD_WS, 4)}, {s(S_T0)} offset:{4 * k}")
                a("s_nop 1")

    def build(self):
        c = self.cfg
        a = Stream()
        self.prologue(a)
        self.gemm1_pass1(a)
        a(f"s_cmp_ge_u32 {s(S_J)}, 12\ns_cbranch_scc1 L_typec")
        t = a.fork()
        self.gemm1_pass2(a, False)
        t.label("L_typec")
        self.gemm1_pass2(t, True)
        join(a, t)
        t("s_nop 1\ns_branch L_join")
        a.label("L_join")
        self.attention_entry(a)
        self.attention(a)
        n = a.fork()
        if c.stop > 2:
            a(f"s_cmp_eq_u32 {s(S_GN)}, 7\ns_cbranch_scc1 L_noout")
            self.gemm3(a)
            a.label("L_fin")
        else:
            a("s_branch L_noout\nL_fin:")
        n.label("L_noout")
        n.drain()
        n(self.barrier())
        n(self.signal([], S_OFLAG, V_SUM))
        n("s_branch L_fin")
        self.finish(a)
        a.label("L_end")
        a("s_endpgm")
        body = a.text() + t.text() + n.text() + "\n".join(("    " + l if not l.endswith(":") else l) for l in self.tail) + "\nL_code_end:\n"
        print(f"nops {a.nops + t.nops}, waits {a.waits}, lines {len(a.out)} + {len(t.out)}", file=sys.stderr)
        return wrap([(NAME + "_kernel", body, 256, 102, 256)], [(NAME + "_kernel", 256, 512, 163840)])


if __name__ == "__main__":
    cfg = Cfg()
    for arg in sys.argv[2:]:
        k, _, val = arg.partition("=")
        setattr(cfg, k, type(getattr(cfg, k))(val))
    open(sys.argv[1], "w").write(Gen(cfg).build())
```
